```python
import torch

def _softmax(x, axis=-1):
    return torch.softmax(x, dim=axis)
def _gelu(x):
    return torch.nn.functional.gelu(x, approximate="tanh")
def _silu(x):
    return torch.nn.functional.silu(x)
def _sigmoid(x):
    return torch.sigmoid(x)
def _layernorm(x, axis=-1, eps=1e-5):
    m = x.mean(dim=axis, keepdim=True)
    v = x.var(dim=axis, keepdim=True, unbiased=False)
    return (x - m) / torch.sqrt(v + eps)
def _scatter_add(tgt, idx, src, axis=0):
    return tgt.clone().index_add_(axis, idx, src)
def _segment_sum(src, seg, n):
    out = torch.zeros((n,) + src.shape[1:], dtype=src.dtype)
    return out.index_add_(0, seg, src)
def _pad(x, pw):
    flat = tuple(v for pair in reversed(pw) for v in pair)
    return torch.nn.functional.pad(x, flat)

kernel_name = 'sequential_preLN__softmax_full_mha__geglu_ffn__prompt'

def setup_inputs():

    _w = (lambda a: (lambda t: t.to(torch.bfloat16) if t.is_floating_point() else t)(torch.as_tensor(a)))
    def _A_setup():
        B, S, D = 1, 2048, 640
        return {
            "x": _w((lambda *s: torch.randn(*s, dtype=torch.bfloat16) * 0.05)(B, S, D)),
            "wqkv": _w((lambda *s: torch.randn(*s, dtype=torch.bfloat16) * 0.05)(D, 3 * D)),
            "wo": _w((lambda *s: torch.randn(*s, dtype=torch.bfloat16) * 0.05)(D, D)),
        }
    _A_in = _A_setup()

    def _B_setup():
        B, S, D, F = 1, 2048, 640, 1728
        return {
            "x": _w((lambda *s: torch.randn(*s, dtype=torch.bfloat16) * 0.05)(B, S, D)),
            "w_gate": _w((lambda *s: torch.randn(*s, dtype=torch.bfloat16) * 0.05)(D, F)),
            "w_up": _w((lambda *s: torch.randn(*s, dtype=torch.bfloat16) * 0.05)(D, F)),
            "w_down": _w((lambda *s: torch.randn(*s, dtype=torch.bfloat16) * 0.05)(F, D)),
        }
    _B_in = _B_setup()

    return {
        "A_x": _A_in["x"],
        "A_wqkv": _A_in["wqkv"],
        "A_wo": _A_in["wo"],
        "B_x": _B_in["x"],
        "B_w_gate": _B_in["w_gate"],
        "B_w_up": _B_in["w_up"],
        "B_w_down": _B_in["w_down"],
    }

def reference(A_x, A_wqkv, A_wo, B_x, B_w_gate, B_w_up, B_w_down):
    def _A_ref(x, wqkv, wo):
        B, S, D = x.shape
        H = 32; Dh = D // H
        qkv = (lambda x, *d: x.permute(*d))((x @ wqkv).reshape(B, S, 3, H, Dh), 2, 0, 3, 1, 4)
        q, k, v = qkv[0], qkv[1], qkv[2]
        scale = Dh ** -0.5
        scores = torch.einsum("bhqd,bhkd->bhqk", q, k) * scale
        p = _softmax(scores, axis=-1)
        o = torch.einsum("bhqk,bhkd->bhqd", p, v)
        return (lambda x, *d: x.permute(*d))(o, 0, 2, 1, 3).reshape(B, S, D) @ wo

    def _B_ref(x, w_gate, w_up, w_down):
        return (_gelu(x @ w_gate) * (x @ w_up)) @ w_down

    x = A_x
    h = x + _A_ref(_layernorm(x, axis=-1), A_wqkv, A_wo)
    h2 = h + _B_ref(_layernorm(h, axis=-1), B_w_gate, B_w_up, B_w_down)
    return h2
```

```python
import re

REG_RE = re.compile(r'^(-?)(abs\()?([vsa])(?:(\d+)|\[(\d+):(\d+)\])\)?$')

def regs_of(op):
    op = op.strip()
    if op in ('vcc', 'vcc_lo', 'vcc_hi'): return {('s', 'vcc')}
    if op in ('exec', 'exec_lo', 'exec_hi'): return {('s', 'exec')}
    if op == 'm0': return {('s', 'm0')}
    m = REG_RE.match(op)
    if not m: return set()
    k = m.group(3)
    if m.group(4) is not None:
        return {(k, int(m.group(4)))}
    return {(k, i) for i in range(int(m.group(5)), int(m.group(6)) + 1)}

TRANS = ('v_exp_', 'v_log_', 'v_rcp_', 'v_rsq_', 'v_sqrt_', 'v_sin_', 'v_cos_')

class Ins:
    def __init__(self, text):
        self.text = text
        t = text.split(';')[0].strip()
        self.raw = t
        parts = t.split(None, 1)
        self.op = parts[0] if parts else ''
        rest = parts[1] if len(parts) > 1 else ''
        ops = [o.strip() for o in rest.split(',')] if rest else []
        self.mods = ''
        if ops:
            last = ops[-1].split()
            if len(last) > 1:
                ops[-1] = last[0]; self.mods = ' '.join(last[1:])
        self.ops = ops
        op = self.op
        self.is_mfma = op.startswith('v_mfma')
        self.is_valu = op.startswith('v_') and not self.is_mfma
        self.is_trans = op.startswith(TRANS)
        self.is_dot = op.startswith('v_dot')
        self.is_ds = op.startswith('ds_')
        self.is_vmem = op.startswith(('buffer_', 'global_'))
        self.is_salu = op.startswith('s_')
        self.is_dpp = ('row_' in self.mods or 'quad_perm' in self.mods or 'wave_' in self.mods or op.endswith('_dpp'))
        self.is_perm = op.startswith('v_permlane')
        self.is_sdwa = op.endswith('_sdwa') or ('op_sel' in self.mods and not op.startswith('v_pk_'))
        self.w = set(); self.r = set()
        self.srcC = set(); self.srcAB = set()
        self.passes = 0
        R = [regs_of(o) for o in ops]
        if self.is_mfma:
            self.w = R[0]; self.srcAB = R[1] | R[2]; self.srcC = R[3]; self.r = self.srcAB | self.srcC
            if '32x32x16' in op or '32x32x8' in op: self.passes = 8
            elif '16x16x32' in op or '16x16x16' in op: self.passes = 4
            elif '4x4x4' in op: self.passes = 2
            else: raise ValueError(op)
        elif self.is_valu:
            if op.startswith('v_cmp'):
                self.w = R[0]; self.r = set().union(*R[1:])
            elif op.startswith(('v_add_co', 'v_addc_co', 'v_sub_co', 'v_subb_co')):
                self.w = R[0] | R[1]; self.r = set().union(*R[2:])
            elif self.is_perm and 'swap' in op:
                self.w = R[0] | R[1]; self.r = R[0] | R[1]
            else:
                self.w = R[0]; self.r = set().union(*R[1:]) if len(R) > 1 else set()
                if op.startswith(('v_fmac', 'v_dot2c', 'v_pk_fmac')) or 'UNUSED_PRESERVE' in self.mods or self.is_dpp or op.startswith('v_writelane'):
                    self.r |= R[0]
                if op.startswith('v_cndmask') and len(ops) == 3: self.r |= {('s', 'vcc')}
        elif self.is_ds:
            if op.startswith(('ds_read', 'ds_bpermute', 'ds_permute', 'ds_swizzle')):
                self.w = R[0]; self.r = set().union(*R[1:])
            else:
                self.r = set().union(*R)
        elif self.is_vmem:
            lds = ' lds' in (' ' + self.mods) or '_lds_' in op
            self.is_dma = lds
            if 'load' in op and not lds:
                self.w = R[0]; self.r = set().union(*R[1:])
            else:
                self.r = set().union(*R)
                if lds: self.r |= {('s', 'm0')}
            self.store_data = set()
            if 'store' in op and ('x4' in op or 'x3' in op):
                self.store_data = R[0] if op.startswith('buffer') else R[1]
        elif self.is_salu:
            if op.startswith(('s_cmp', 's_waitcnt', 's_nop', 's_barrier', 's_branch', 's_cbranch', 's_endpgm', 's_setprio', 's_sleep', 's_bitcmp')):
                self.r = set().union(*R) if R else set()
            else:
                self.w = R[0] if R else set(); self.r = set().union(*R[1:]) if len(R) > 1 else set()
                if 'saveexec' in op: self.w |= {('s', 'exec')}
    def states(self):
        if self.op == 's_nop': return int(self.ops[0], 0) + 1
        return 1

XDL_RAW = {2: 5, 4: 8, 8: 12, 16: 20}
XDL_COVL = {2: 4, 4: 6, 8: 10, 16: 18}
XDL_CWAR = {2: 1, 4: 3, 8: 7, 16: 15}

def need(p, c):
    n = 0
    isv = lambda s: {x for x in s if x[0] in 'va'}
    iss = lambda s: {x for x in s if x[0] == 's'}
    if p.is_valu:
        pw = isv(p.w)
        if c.is_mfma and pw & c.r: n = max(n, 2)
        if p.is_trans and c.is_valu and not c.is_trans and pw & c.r: n = max(n, 1)
        if p.is_trans and (c.is_valu and c.is_trans) and pw & c.r: n = max(n, 1)
        if c.op.startswith(('v_readfirstlane', 'v_readlane')) and pw & c.r: n = max(n, 1)
        if (c.is_perm or c.is_dpp) and pw & c.r: n = max(n, 2)
        if p.is_sdwa and c.is_valu and pw & (c.r | c.w): n = max(n, 1)
        if p.is_dot and (c.is_valu or c.is_mfma or c.is_vmem or c.is_ds) and pw & (c.r | c.w):
            if c.op == p.op and not (pw & set().union(*[regs_of(o) for o in c.ops[1:]])): pass
            else: n = max(n, 3)
        sw = iss(p.w)
        if sw:
            if c.is_valu and sw & c.r: n = max(n, 4 if c.op.startswith(('v_readlane', 'v_writelane')) else 2)
            if c.is_vmem and sw & c.r: n = max(n, 5)
            if c.is_salu and sw & c.r: n = max(n, 1)
            if ('s', 'exec') in sw: n = max(n, 5)
    if p.is_mfma:
        if c.is_mfma:
            if p.w & c.srcAB: n = max(n, XDL_RAW[p.passes])
            if p.w & c.srcC:
                if p.w == c.srcC and p.passes == c.passes: n = max(n, 2 if p.passes == 2 else 0)
                else: n = max(n, XDL_COVL[p.passes])
            elif p.w & c.w:
                n = max(n, XDL_COVL[p.passes])
        elif c.is_valu or c.is_vmem or c.is_ds:
            if p.w & (c.r | c.w): n = max(n, XDL_RAW[p.passes])
            if c.is_valu and p.srcC & c.w: n = max(n, XDL_CWAR[p.passes])
    if p.is_salu and ('s', 'm0') in p.w and c.is_vmem and getattr(c, 'is_dma', False): n = max(n, 1)
    if p.is_vmem and getattr(p, 'store_data', None):
        if p.store_data & c.w: n = max(n, 2 if c.is_valu else 1)
    return n

class Asm:
    def __init__(self):
        self.lines = []
        self.autopad = True
        self.npad = 0
    def raw(self, s): self.lines.append(s)
    def label(self, name): self.lines.append(name + ':')
    def comment(self, s): self.lines.append('    ; ' + s)
    def __call__(self, text):
        for t in text.strip().split('\n'):
            t = t.strip()
            if not t or t.startswith(';'): continue
            ins = Ins(t)
            if self.autopad:
                k = self._pad_needed(ins, self.lines)
                while k > 0:
                    m = min(k, 16)
                    self.lines.append(Ins(f's_nop {m-1}')); k -= m; self.npad += 1
            self.lines.append(ins)
    @staticmethod
    def _pad_needed(ins, hist):
        d = 0; k = 0
        for p in reversed(hist):
            if not isinstance(p, Ins): continue
            if d >= 20: break
            n = need(p, ins)
            if n > d: k = max(k, n - d)
            d += p.states()
        return k
    def check_backedge(self, head_label, branch_idx=None):
        i0 = self.lines.index(head_label + ':')
        body = [l for l in self.lines[i0+1:] if isinstance(l, Ins)]
        hist = list(body)
        bad = []
        for ins in body[:24]:
            k = self._pad_needed(ins, hist)
            if k > 0: bad.append((ins.text, k))
            hist.append(ins)
        assert not bad, f"backedge hazards at {head_label}: {bad}"
    def text(self):
        out = []
        for l in self.lines:
            out.append(('    ' + l.text) if isinstance(l, Ins) else l)
        return '\n'.join(out) + '\n'

def vr(a, n=1):
    return f'v{a}' if n == 1 else f'v[{a}:{a+n-1}]'
def sr(a, n=1):
    return f's{a}' if n == 1 else f's[{a}:{a+n-1}]'
def ar(a, n=1):
    return f'a{a}' if n == 1 else f'a[{a}:{a+n-1}]'
```

```python
from asmlib import *
from layout import *
from stamp import Stamps

def interleave(a, mf, fill):
    n = len(mf); k = len(fill); j = 0
    for i, m in enumerate(mf):
        a(m)
        upto = (k * (i + 1) + n - 1) // n
        while j < upto:
            a(fill[j]); j += 1

QS = 20 ** -0.5 * 1.4426950408889634
import struct, os
def f2u(f): return struct.unpack('<I', struct.pack('<f', f))[0]

K1_LDS = 131072 + 1536
def gen_k1(a, name):
    a.raw(f".p2align 8\n.globl {name}\n.type {name},@function\n{name}:")
    a(f"""
    s_cmp_ge_u32 s2, 240
    s_cbranch_scc1 L_k1_end
    """)
    st = Stamps(a, 0, 8); st(real=True); st()
    a(f"""
    s_load_dwordx4 s[4:7], s[0:1], 0
    s_load_dwordx2 s[8:9], s[0:1], 72
    v_lshrrev_b32 v2, 6, v0
    v_and_b32 v1, 63, v0
    s_and_b32 s10, s2, 7
    v_readfirstlane_b32 s24, v2
    s_lshr_b32 s11, s2, 3
    s_and_b32 s33, s10, 1
    s_mul_i32 s33, s33, 30
    s_add_u32 s33, s33, s11
    s_lshr_b32 s26, s33, 2
    s_and_b32 s33, s33, 3
    s_lshr_b32 s10, s10, 1
    s_lshl_b32 s10, s10, 2
    s_add_u32 s25, s10, s33
    s_cmp_lt_u32 s24, 4
    s_cbranch_scc1 L_k1_compute
    s_sub_u32 s24, s24, 4
    """)
    a(f"""
    v_lshrrev_b32 v10, 3, v1
    s_lshl_b32 s33, s24, 5
    v_add_u32 v10, s33, v10
    v_mul_u32_u24 v10, 1280, v10
    v_lshrrev_b32 v11, 4, v1
    v_and_b32 v12, 7, v1
    v_xor_b32 v12, v12, v11
    v_lshl_add_u32 v2, v12, 4, v10
    v_xor_b32 v12, 4, v12
    v_lshl_add_u32 v3, v12, 4, v10
    v_add_u32 v3, 9216, v3
    v_add_u32 v4, 18432, v2
    v_add_u32 v5, 18432, v3
    """)
    a(f"""
    s_lshl_b32 s33, s24, 4
    v_add_u32 v13, s33, v11
    v_mul_u32_u24 v13, 3840, v13
    v_lshlrev_b32 v14, 2, v11
    v_and_b32 v12, 15, v1
    v_xor_b32 v12, v12, v14
    v_lshl_add_u32 v6, v12, 4, v13
    v_add_u32 v7, 14336, v6
    v_add_u32 v8, 28672, v6
    v_add_u32 v9, 43008, v6
    s_mul_i32 s27, s25, 163840
    s_lshl_b32 s28, s26, 8
    s_lshl_b32 s34, s24, 12
    s_add_u32 s35, s34, 16384
    s_mov_b32 s14, {2048*640*2}
    s_mov_b32 s15, 0x20000
    s_mov_b32 s18, {640*1920*2}
    s_mov_b32 s19, 0x20000
    s_waitcnt lgkmcnt(0)
    s_mov_b32 s12, s4
    s_mov_b32 s13, s5
    s_mov_b32 s16, s6
    s_mov_b32 s17, s7
    """)
    def dma(slot_expr_A, slot_expr_W):
        l = [slot_expr_A]
        l += [f"buffer_load_dwordx4 v{2+i}, s[12:15], s27 offen offset:{1024*i} lds" for i in range(4)]
        l += [slot_expr_W]
        l += [f"buffer_load_dwordx4 v{6+i}, s[16:19], s28 offen offset:{1024*i} lds" for i in range(4)]
        l += ["s_add_u32 s27, s27, 128", f"s_add_u32 s28, s28, {64*3840}"]
        return l
    slots = (0, 0x8000, 0x18000, 0x10000)
    for slot in slots:
        for t in dma(f"s_add_u32 m0, s34, {slot}", f"s_add_u32 m0, s35, {slot}"): a(t)
    for s_ in range(10):
        a(f"s_waitcnt vmcnt({24 if s_ == 0 else 8*min(2, 9-s_)})")
        a("s_barrier")
        if s_ >= 1 and s_ + 3 <= 9:
            slot = slots[(s_ - 1) % 4]
            for t in dma(f"s_add_u32 m0, s34, {slot}", f"s_add_u32 m0, s35, {slot}"): a(t)
    a("s_endpgm")
    a.label("L_k1_compute")
    st()
    a(f"""
    s_lshr_b32 s36, s24, 1
    s_and_b32 s37, s24, 1
    v_and_b32 v56, 31, v1
    v_lshrrev_b32 v57, 5, v1
    v_lshrrev_b32 v58, 1, v56
    v_and_b32 v58, 7, v58
    v_xor_b32 v58, v58, v57
    s_lshl_b32 s33, s36, 13
    s_lshl_b32 s38, s37, 12
    s_add_u32 s33, s33, s38
    v_lshlrev_b32 v59, 7, v56
    v_add_u32 v59, s33, v59
    """)
    for ks in range(4):
        a(f"v_xor_b32 v60, {2*ks}, v58")
        a(f"v_lshl_add_u32 v{10+ks}, v60, 4, v59")
        a(f"v_xor_b32 v{14+ks}, 4096, v{10+ks}")
    a(f"""
    v_bfe_u32 v60, v1, 2, 2
    v_lshl_add_u32 v61, v57, 3, v60
    v_lshlrev_b32 v61, 8, v61
    v_bfe_u32 v62, v1, 4, 1
    v_bfe_u32 v63, v1, 1, 1
    v_lshl_add_u32 v62, v62, 1, v63
    s_lshl_b32 s33, s37, 1
    s_add_u32 s33, s33, s36
    v_xor_b32 v60, s33, v60
    v_lshl_add_u32 v62, v60, 2, v62
    v_lshl_add_u32 v61, v62, 4, v61
    v_and_b32 v63, 1, v1
    v_lshl_add_u32 v61, v63, 3, v61
    v_add_u32 v18, 16384, v61
    v_xor_b32 v19, 64, v18
    v_mov_b32 v224, 0x3f803f80
    v_mov_b32 v225, 0x3f803f80
    s_mov_b32 s29, 0
    s_mov_b32 s30, 0
    s_mov_b32 s31, 0x8000
    s_waitcnt lgkmcnt(0)
    s_mov_b32 s20, s8
    s_mov_b32 s21, s9
    s_mov_b32 s22, {2*KV_SIZE}
    s_mov_b32 s23, 0x20000
    """)
    for i in range(64): a(f"v_mov_b32 v{64+i}, 0")
    for i in range(12): a(f"v_mov_b32 v{212+i}, 0")
    def reads(ks, S):
        l = [f"ds_read_b128 v[{S}:{S+3}], v{10+ks}",
             f"ds_read_b64_tr_b16 v[{S+8}:{S+9}], v18 offset:{(16*ks)*256}",
             f"ds_read_b64_tr_b16 v[{S+10}:{S+11}], v18 offset:{(16*ks+4)*256}",
             f"ds_read_b128 v[{S+4}:{S+7}], v{14+ks}",
             f"ds_read_b64_tr_b16 v[{S+12}:{S+13}], v19 offset:{(16*ks)*256}",
             f"ds_read_b64_tr_b16 v[{S+14}:{S+15}], v19 offset:{(16*ks+4)*256}"]
        return l
    def mfmas(S, vmode):
        l = []
        for tt, ft in ((0, 0), (0, 1), (1, 0), (1, 1)):
            acc = 64 + 16 * (2 * tt + ft)
            x = f"v[{S+4*tt}:{S+4*tt+3}]"; w = f"v[{S+8+4*ft}:{S+8+4*ft+3}]"
            A, B = (x, w) if vmode else (w, x)
            l.append(f"v_mfma_f32_32x32x16_bf16 v[{acc}:{acc+15}], {A}, {B}, v[{acc}:{acc+15}]")
        return l
    def dots(S):
        if os.environ.get("NODOT"): return []
        l = []
        for i in range(2):
            l += [f"v_mfma_f32_4x4x4_16b_bf16 v[212:215], v[{S+2*i}:{S+2*i+1}], v[224:225], v[212:215]",
                  f"v_mfma_f32_4x4x4_16b_bf16 v[216:219], v[{S+2*i}:{S+2*i+1}], v[{S+2*i}:{S+2*i+1}], v[216:219]",
                  f"v_mfma_f32_4x4x4_16b_bf16 v[220:223], v[{S+8+2*i}:{S+8+2*i+1}], v[224:225], v[220:223]"]
        return l
    P, Q = 24, 40
    st()
    a("s_barrier")
    st()
    n0 = st.n
    for t in reads(0, P): a(t)
    a("s_cmp_ge_u32 s26, 10")
    a("s_cbranch_scc1 L_k1_loopV")
    for vmode, L in ((0, "L_k1_loopQ"), (1, "L_k1_loopV")):
        a.raw(".p2align 6")
        a.label(L)
        for ks in range(3):
            cur, nxt = (P, Q) if ks % 2 == 0 else (Q, P)
            rd = reads(ks + 1, nxt)
            for t in rd[:3]: a(t)
            a("s_waitcnt lgkmcnt(3)")
            d = dots(cur)
            tog = [f"v_xor_b32 v{10+ks}, s31, v{10+ks}", f"v_xor_b32 v{14+ks}, s31, v{14+ks}"]
            interleave(a, mfmas(cur, vmode), rd[3:] + d + tog)
        m = mfmas(Q, vmode); d = dots(Q)
        a("s_waitcnt lgkmcnt(0)")
        a(m[0])
        a("v_xor_b32 v18, s31, v18"); a("v_xor_b32 v19, s31, v19")
        for t in d[:3]: a(t)
        a(m[1])
        a("s_barrier")
        for t in reads(0, P): a(t)
        a(m[2])
        for t in d[3:5]: a(t)
        a("v_xor_b32 v13, s31, v13"); a("v_xor_b32 v17, s31, v17")
        a(m[3])
        for t in d[5:]: a(t)
        a(f"""
        s_xor_b32 s30, s30, s31
        s_xor_b32 s31, s31, 0x18000
        s_add_u32 s29, s29, 1
        s_cmp_lt_u32 s29, 10
        s_cbranch_scc1 {L}
        """)
        a.check_backedge(L)
        st.n = n0; st()
        SC = 131072
        a(f"""
        s_mov_b32 s46, 0x22222222
        s_mov_b32 s47, 0x22222222
        s_mov_b32 s48, 0x44444444
        s_mov_b32 s49, 0x44444444
        s_mov_b32 s50, 0x88888888
        s_mov_b32 s51, 0x88888888
        v_cndmask_b32 v20, v212, v213, s[46:47]
        v_cndmask_b32 v21, v216, v217, s[46:47]
        v_cndmask_b32 v22, v220, v221, s[46:47]
        v_cndmask_b32 v20, v20, v214, s[48:49]
        v_cndmask_b32 v21, v21, v218, s[48:49]
        v_cndmask_b32 v22, v22, v222, s[48:49]
        v_cndmask_b32 v20, v20, v215, s[50:51]
        v_cndmask_b32 v21, v21, v219, s[50:51]
        v_cndmask_b32 v22, v22, v223, s[50:51]
        v_mov_b32 v128, v20
        v_mov_b32 v129, v21
        v_mov_b32 v130, v22
        s_nop 1
        v_permlane32_swap_b32 v128, v20
        v_permlane32_swap_b32 v129, v21
        v_permlane32_swap_b32 v130, v22
        v_add_f32 v20, v20, v128
        v_add_f32 v21, v21, v129
        v_add_f32 v22, v22, v130
        v_mul_f32 v20, {f2u(-1.0/640):#x}, v20
        v_mul_f32 v21, {f2u(1.0/640):#x}, v21
        v_fma_f32 v21, -v20, v20, v21
        v_max_f32 v21, 0, v21
        v_add_f32 v21, {f2u(1e-5):#x}, v21
        v_rsq_f32 v21, v21
        """)
        a(f"""
        s_lshl_b32 s33, s36, 8
        s_lshl_b32 s38, s37, 7
        s_add_u32 s39, s33, s38
        v_lshlrev_b32 v131, 2, v56
        v_add_u32 v132, s39, v131
        s_lshl_b32 s33, s37, 8
        s_lshl_b32 s38, s36, 7
        s_add_u32 s40, s33, s38
        v_add_u32 v133, s40, v131
        v_add_u32 v132, {SC}, v132
        v_add_u32 v133, {SC}, v133
        """)
        if not vmode:
            a(f"""
            s_cmp_lt_u32 s26, 5
            s_cselect_b32 s33, {f2u(QS):#x}, 1.0
            v_mul_f32 v21, s33, v21
            """)
        a(f"""
        ds_write_b32 v132, v21
        ds_write_b32 v132, v20 offset:512
        ds_write_b32 v133, v22 offset:1024
        s_waitcnt lgkmcnt(0)
        s_barrier
        """)
        if not vmode:
            a(f"""
            v_xor_b32 v132, 128, v132
            ds_read_b32 v136, v132
            ds_read_b32 v137, v132 offset:512
            v_mov_b32 v134, v21
            v_mov_b32 v135, v20
            """)
            a(f"""
            v_lshlrev_b32 v138, 4, v57
            v_add_u32 v138, s40, v138
            v_add_u32 v138, {SC+1024}, v138
            v_xor_b32 v139, 128, v138
            """)
            for ft in range(2):
                for g in range(4):
                    r = 144 + 16 * ft + 4 * g
                    a(f"ds_read_b128 v[{r}:{r+3}], v{138+ft} offset:{32*g}")
            a(f"""
            s_cmp_lt_u32 s26, 5
            s_cselect_b32 s41, {QF_OFF}, {KV_OFF}
            s_cselect_b32 s33, 0, 5
            s_sub_u32 s33, s26, s33
            s_lshl_b32 s33, s33, 5
            s_lshl_b32 s38, s37, 4
            s_add_u32 s33, s33, s38
            s_lshl_b32 s38, s36, 3
            s_add_u32 s33, s33, s38
            s_mul_i32 s38, s25, 10240
            s_add_u32 s41, s41, s38
            s_lshl_b32 s38, s39, 1
            s_add_u32 s42, s41, s38
            s_xor_b32 s38, s38, 256
            s_add_u32 s43, s41, s38
            v_add_u32 v140, s33, v57
            v_lshlrev_b32 v141, 3, v56
            s_mov_b32 s44, {163840-5120}
            """)
            for ft in range(2):
                for g in range(4):
                    r = 176 + 4 * ft + g
                    a(f"v_xor_b32 v142, {8*ft}, v140")
                    if g: a(f"v_add_u32 v142, {2*g}, v142")
                    a(f"v_mul_u32_u24 v143, 205, v142")
                    a(f"v_lshrrev_b32 v143, 10, v143")
                    a(f"v_lshl_add_u32 v142, v142, 10, v141")
                    a(f"v_mad_u32_u24 v{r}, v143, s44, v142")
            a("s_waitcnt lgkmcnt(0)")
            for tt in range(2):
                am = 134 + 2 * tt
                for ft in range(2):
                    acc = 64 + 16 * (2 * tt + ft)
                    for g in range(4):
                        for p in range(2):
                            r = acc + 4 * g + 2 * p; c = 144 + 16 * ft + 4 * g + 2 * p
                            a(f"v_pk_fma_f32 v[{r}:{r+1}], v[{c}:{c+1}], v[{am}:{am+1}], v[{r}:{r+1}] op_sel:[0,1,0] op_sel_hi:[1,1,1]")
                        for p in range(2):
                            r = acc + 4 * g + 2 * p
                            a(f"v_pk_mul_f32 v[{r}:{r+1}], v[{r}:{r+1}], v[{am}:{am+1}] op_sel:[0,0] op_sel_hi:[1,0]")
                        r = acc + 4 * g
                        a(f"v_cvt_pk_bf16_f32 v{r}, v{r}, v{r+1}")
                        a(f"v_cvt_pk_bf16_f32 v{r+1}, v{r+2}, v{r+3}")
                        a(f"buffer_store_dwordx2 v[{r}:{r+1}], v{176+4*ft+g}, s[20:23], s{42+tt} offen")
            st(); a("s_waitcnt vmcnt(0)"); st(); st.flush(2, 24)
            a("s_endpgm")
        else:
            a(f"""
            v_xor_b32 v133, 128, v133
            ds_read_b32 v136, v133 offset:1024
            v_mov_b32 v134, v22
            v_lshlrev_b32 v138, 4, v57
            v_add_u32 v138, s39, v138
            v_add_u32 v138, {SC}, v138
            v_xor_b32 v139, 128, v138
            """)
            for tt in range(2):
                for g in range(4):
                    r = 144 + 32 * tt + 4 * g
                    a(f"ds_read_b128 v[{r}:{r+3}], v{138+tt} offset:{32*g}")
                    a(f"ds_read_b128 v[{r+16}:{r+19}], v{138+tt} offset:{512+32*g}")
            a(f"""
            s_sub_u32 s33, s26, 10
            s_lshl_b32 s33, s33, 7
            s_lshr_b32 s38, s40, 2
            s_add_u32 s33, s33, s38
            v_add_u32 v140, s33, v56
            s_mul_i32 s41, s25, 10240
            s_add_u32 s41, s41, {KV_OFF+5120}
            s_lshr_b32 s38, s39, 7
            s_mul_i32 s42, s38, 1280
            s_add_u32 s42, s42, s41
            s_xor_b32 s38, s38, 1
            s_mul_i32 s43, s38, 1280
            s_add_u32 s43, s43, s41
            s_mov_b32 s44, {163840-320}
            v_mul_u32_u24 v141, 320, v57
            """)
            for ft in range(2):
                a(f"v_xor_b32 v142, {32*ft}, v140")
                a(f"v_mul_u32_u24 v143, 3277, v142")
                a(f"v_lshrrev_b32 v143, 16, v143")
                a(f"v_lshl_add_u32 v142, v142, 4, v141")
                a(f"v_mad_u32_u24 v{208+ft}, v143, s44, v142")
            a("s_waitcnt lgkmcnt(0)")
            for tt in range(2):
                for ft in range(2):
                    acc = 64 + 16 * (2 * tt + ft)
                    cs = 134 + 2 * ft
                    for j in range(2):
                        for p in range(4):
                            r = acc + 8 * j + 2 * p; m = 144 + 32 * tt + 16 + 8 * j + 2 * p
                            a(f"v_pk_fma_f32 v[{r}:{r+1}], v[{m}:{m+1}], v[{cs}:{cs+1}], v[{r}:{r+1}] op_sel:[0,0,0] op_sel_hi:[1,0,1]")
                        for p in range(4):
                            r = acc + 8 * j + 2 * p; m = 144 + 32 * tt + 8 * j + 2 * p
                            a(f"v_pk_mul_f32 v[{r}:{r+1}], v[{r}:{r+1}], v[{m}:{m+1}]")
                        r = acc + 8 * j
                        for p in range(4):
                            a(f"v_cvt_pk_bf16_f32 v{r+p}, v{r+2*p}, v{r+2*p+1}")
                        a(f"buffer_store_dwordx4 v[{r}:{r+3}], v{208+ft}, s[20:23], s{42+tt} offen offset:{640*j}")
    st(); a("s_waitcnt vmcnt(0)"); st(); st.flush(2, 24)
    a.label("L_k1_end")
    a("s_endpgm")
    return dict(name=name, vgpr=226, sgpr=100, grid=240, block=512, lds=K1_LDS)
```

```python
import numpy as np
S, D, H, DH, F = 2048, 640, 32, 20, 1728
KV_OFF = 0
KV_SIZE = 32 * 163840
QF_OFF = KV_OFF + KV_SIZE
OF_OFF = QF_OFF + KV_SIZE
FR_SIZE = 64 * 80 * 512
HF_OFF = OF_OFF + FR_SIZE
ST_OFF = HF_OFF + FR_SIZE
ST_SIZE = 2048 * 8 * 8
AF_OFF = ST_OFF + ST_SIZE
AF_SIZE = 64 * 216 * 512
WS_USED = AF_OFF + AF_SIZE

def decode_qkv(ws):
    kv = ws[KV_OFF // 2:(KV_OFF + KV_SIZE) // 2].reshape(32, 16, 2, 2560)
    qf = ws[QF_OFF // 2:(QF_OFF + KV_SIZE) // 2].reshape(32, 16, 2, 2560)
    def kq(a):
        a = a.reshape(32, 16, 5, 128, 4).transpose(1, 3, 0, 2, 4).reshape(2048, 640); return a
    k = kq(kv[:, :, 0]); q = kq(qf[:, :, 0])
    v = kv[:, :, 1].reshape(32, 16, 4, 2, 2, 20, 2, 4)
    v = v.transpose(1, 2, 3, 6, 4, 7, 0, 5).reshape(2048, 640)
    return q, k, v

def o_perm():
    p = np.zeros((80, 8), dtype=np.int64)
    for kk in range(80):
        for e in range(8):
            if kk < 64:
                hd, h = kk >> 1, kk & 1
                p[kk, e] = 20 * hd + 4 * h + (e & 3) + 8 * (e >> 2)
            else:
                pp = kk - 64
                p[kk, e] = 40 * pp + 16 + (e & 3) + 20 * (e >> 2)
    return p.reshape(-1)

def decode_frag(ws, off, n):
    a = ws[off // 2: off // 2 + 2048 * n].reshape(64, n // 8, 32, 8).transpose(0, 2, 1, 3).reshape(2048, n)
    return a

def decode_o(ws):
    a = decode_frag(ws, OF_OFF, 640)
    o = np.empty_like(a); o[:, o_perm()] = a
    return o
```

```python
import os
ON = int(os.environ.get("STAMP", "0"))
STAMP_OFF = 128 << 20
S0 = 64
class Stamps:
    def __init__(self, a, kidx, ws_pair):
        self.a = a; self.n = 0; self.kidx = kidx; self.ws = ws_pair
    def __call__(self, real=False):
        if not ON: return
        r = S0 + 2 * self.n
        self.a(f"s_memrealtime s[{r}:{r+1}]" if real else f"s_memtime s[{r}:{r+1}]")
        self.n += 1
    def flush(self, vtmp, wave_s):
        if not ON: return
        a = self.a
        self(real=True)
        a("s_waitcnt lgkmcnt(0)")
        a(f"s_mov_b32 s96, s{self.ws}\ns_mov_b32 s97, s{self.ws+1}\ns_mov_b32 s98, 0x10000000\ns_mov_b32 s99, 0x20000")
        a(f"s_lshl_b32 s94, s2, 4\ns_add_u32 s94, s94, s{wave_s}\ns_lshl_b32 s94, s94, 6\ns_add_u32 s94, s94, {STAMP_OFF + self.kidx*512*16*64}")
        a("s_mov_b64 exec, 1")
        a(f"v_mov_b32 v{vtmp+1}, 0")
        for i in range(self.n):
            a(f"v_mov_b32 v{vtmp}, s{S0+2*i}")
            a(f"buffer_store_dword v{vtmp}, v{vtmp+1}, s[96:99], s94 offen offset:{4*i}")
```

```python
import sys
sys.path.insert(0, "dev")
from asmlib import *
import importlib
HDR = open("sequential_preLN__softmax_full_mha__geglu_ffn__prompt.s.ref").read().split("; Override launch")[0]
def build(kernels, out):
    a = Asm()
    infos = []
    for fn, name in kernels:
        infos.append(fn(a, name))
    s = HDR
    for i in infos:
        s += f"; @launch kernel={i['name']} grid=({i['grid']},1,1) block=({i['block']},1,1) lds={i['lds']}\n"
    s += '.amdgcn_target "amdgcn-amd-amdhsa--gfx950"\n.text\n'
    s += a.text()
    s += '.section .rodata,"a"\n'
    for i in infos:
        v = i['vgpr']; acc = i.get('accum', (v + 3) // 4 * 4)
        s += f""".p2align 6
.amdhsa_kernel {i['name']}
  .amdhsa_next_free_vgpr {v}
  .amdhsa_next_free_sgpr {i['sgpr']}
  .amdhsa_accum_offset {acc}
  .amdhsa_group_segment_fixed_size 0
  .amdhsa_kernarg_size 80
  .amdhsa_user_sgpr_count 2
  .amdhsa_user_sgpr_kernarg_segment_ptr 1
  .amdhsa_system_sgpr_workgroup_id_x 1
.end_amdhsa_kernel
"""
    open(out, "w").write(s)
    print("wrote", out, "autopads:", a.npad, "lines:", len(a.lines))
if __name__ == "__main__":
    from k1 import gen_k1
    ks = [(gen_k1, "k1_kernel")]
    for mod, fn, nm in (("k2", "gen_k2", "k2_kernel"), ("k35", "gen_k3", "k3_kernel"), ("k4", "gen_k4", "k4_kernel"), ("k35", "gen_k5", "k5_kernel")):
        try:
            m = importlib.import_module(mod)
        except ImportError:
            break
        ks.append((getattr(m, fn), nm))
    build(ks, sys.argv[1] if len(sys.argv) > 1 else "out.s")
```

```python
import re, os

REG_RE = re.compile(r'^(-?)(abs\()?([vsa])(?:(\d+)|\[(\d+):(\d+)\])\)?$')

def regs_of(op):
    op = op.strip()
    if op in ('vcc', 'vcc_lo', 'vcc_hi'): return {('s', 'vcc')}
    if op in ('exec', 'exec_lo', 'exec_hi'): return {('s', 'exec')}
    if op == 'm0': return {('s', 'm0')}
    m = REG_RE.match(op)
    if not m: return set()
    k = m.group(3)
    if m.group(4) is not None:
        return {(k, int(m.group(4)))}
    return {(k, i) for i in range(int(m.group(5)), int(m.group(6)) + 1)}

TRANS = ('v_exp_', 'v_log_', 'v_rcp_', 'v_rsq_', 'v_sqrt_', 'v_sin_', 'v_cos_')

class Ins:
    def __init__(self, text):
        self.text = text
        t = text.split(';')[0].strip()
        self.raw = t
        parts = t.split(None, 1)
        self.op = parts[0] if parts else ''
        rest = parts[1] if len(parts) > 1 else ''
        ops = [o.strip() for o in rest.split(',')] if rest else []
        self.mods = ''
        if ops:
            last = ops[-1].split()
            if len(last) > 1:
                ops[-1] = last[0]; self.mods = ' '.join(last[1:])
        self.ops = ops
        op = self.op
        self.is_mfma = op.startswith('v_mfma')
        self.is_valu = op.startswith('v_') and not self.is_mfma
        self.is_trans = op.startswith(TRANS)
        self.is_dot = op.startswith('v_dot')
        self.is_ds = op.startswith('ds_')
        self.is_vmem = op.startswith(('buffer_', 'global_'))
        self.is_salu = op.startswith('s_')
        self.is_dpp = ('row_' in self.mods or 'quad_perm' in self.mods or 'wave_' in self.mods or op.endswith('_dpp'))
        self.is_perm = op.startswith('v_permlane')
        self.is_sdwa = op.endswith('_sdwa') or ('op_sel' in self.mods and not op.startswith('v_pk_'))
        self.w = set(); self.r = set()
        self.srcC = set(); self.srcAB = set()
        self.passes = 0
        R = [regs_of(o) for o in ops]
        if self.is_mfma:
            self.w = R[0]; self.srcAB = R[1] | R[2]; self.srcC = R[3]; self.r = self.srcAB | self.srcC
            if '32x32x16' in op or '32x32x8' in op: self.passes = 8
            elif '16x16x32' in op or '16x16x16' in op: self.passes = 4
            elif '4x4x4' in op: self.passes = 2
            else: raise ValueError(op)
        elif self.is_valu:
            if op.startswith('v_cmp'):
                self.w = R[0]; self.r = set().union(*R[1:])
            elif op.startswith(('v_add_co', 'v_addc_co', 'v_sub_co', 'v_subb_co')):
                self.w = R[0] | R[1]; self.r = set().union(*R[2:])
            elif self.is_perm and 'swap' in op:
                self.w = R[0] | R[1]; self.r = R[0] | R[1]
            else:
                self.w = R[0]; self.r = set().union(*R[1:]) if len(R) > 1 else set()
                if op.startswith(('v_fmac', 'v_dot2c', 'v_pk_fmac')) or 'UNUSED_PRESERVE' in self.mods or self.is_dpp or op.startswith('v_writelane'):
                    self.r |= R[0]
                if op.startswith('v_cndmask') and len(ops) == 3: self.r |= {('s', 'vcc')}
        elif self.is_ds:
            if op.startswith(('ds_read', 'ds_bpermute', 'ds_permute', 'ds_swizzle')):
                self.w = R[0]; self.r = set().union(*R[1:])
            else:
                self.r = set().union(*R)
        elif self.is_vmem:
            lds = ' lds' in (' ' + self.mods) or '_lds_' in op
            self.is_dma = lds
            if 'load' in op and not lds:
                self.w = R[0]; self.r = set().union(*R[1:])
            else:
                self.r = set().union(*R)
                if lds: self.r |= {('s', 'm0')}
            self.store_data = set()
            if 'store' in op and ('x4' in op or 'x3' in op):
                self.store_data = R[0] if op.startswith('buffer') else R[1]
        elif self.is_salu:
            if op.startswith(('s_cmp', 's_waitcnt', 's_nop', 's_barrier', 's_branch', 's_cbranch', 's_endpgm', 's_setprio', 's_sleep', 's_bitcmp')):
                self.r = set().union(*R) if R else set()
            else:
                self.w = R[0] if R else set(); self.r = set().union(*R[1:]) if len(R) > 1 else set()
                if 'saveexec' in op: self.w |= {('s', 'exec')}
    def states(self):
        if self.op == 's_nop': return int(self.ops[0], 0) + 1
        return 1

XDL_RAW = {2: 5, 4: 8, 8: 12, 16: 20}
XDL_COVL = {2: 4, 4: 6, 8: 10, 16: 18}
XDL_CWAR = {2: 1, 4: 3, 8: 7, 16: 15}

def need(p, c):
    n = 0
    isv = lambda s: {x for x in s if x[0] in 'va'}
    iss = lambda s: {x for x in s if x[0] == 's'}
    if p.is_valu:
        pw = isv(p.w)
        if c.is_mfma and pw & c.r: n = max(n, 2)
        if p.is_trans and c.is_valu and not c.is_trans and pw & c.r: n = max(n, 1)
        if p.is_trans and (c.is_valu and c.is_trans) and pw & c.r: n = max(n, 1)
        if c.op.startswith(('v_readfirstlane', 'v_readlane')) and pw & c.r: n = max(n, 1)
        if (c.is_perm or c.is_dpp) and pw & c.r: n = max(n, 2)
        if p.is_sdwa and c.is_valu and pw & (c.r | c.w): n = max(n, 1)
        if p.is_dot and (c.is_valu or c.is_mfma or c.is_vmem or c.is_ds) and pw & (c.r | c.w):
            if c.op == p.op and not (pw & set().union(*[regs_of(o) for o in c.ops[1:]])): pass
            else: n = max(n, 3)
        sw = iss(p.w)
        if sw:
            if c.is_valu and sw & c.r: n = max(n, 4 if c.op.startswith(('v_readlane', 'v_writelane')) else 2)
            if c.is_vmem and sw & c.r: n = max(n, 5)
            if c.is_salu and sw & c.r: n = max(n, 1)
            if ('s', 'exec') in sw: n = max(n, 5)
    if p.is_mfma:
        if c.is_mfma:
            if p.w & c.srcAB: n = max(n, XDL_RAW[p.passes])
            if p.w & c.srcC:
                if p.w == c.srcC and p.passes == c.passes: n = max(n, 2 if p.passes == 2 else 0)
                else: n = max(n, XDL_COVL[p.passes])
            elif p.w & c.w:
                n = max(n, XDL_COVL[p.passes])
        elif c.is_valu or c.is_vmem or c.is_ds:
            if p.w & (c.r | c.w): n = max(n, XDL_RAW[p.passes])
            if c.is_valu and p.srcC & c.w: n = max(n, XDL_CWAR[p.passes])
    if p.is_salu and ('s', 'm0') in p.w and c.is_vmem and getattr(c, 'is_dma', False): n = max(n, 1)
    if p.is_vmem and getattr(p, 'store_data', None):
        if p.store_data & c.w: n = max(n, 2 if c.is_valu else 1)
    return n

class Asm:
    def __init__(self):
        self.lines = []
        self.autopad = True
        self.npad = 0
    def raw(self, s): self.lines.append(s)
    def label(self, name): self.lines.append(name + ':')
    def comment(self, s): self.lines.append('    ; ' + s)
    def __call__(self, text):
        for t in text.strip().split('\n'):
            t = t.strip()
            if not t or t.startswith(';'): continue
            m = re.match(r's_cselect_b32 (\S+), (\d+), (\d+)$', t)
            if m and int(m.group(2)) > 64 and int(m.group(3)) > 64:
                self(f's_mov_b32 {m.group(1)}, {m.group(3)}'); t = f's_cmov_b32 {m.group(1)}, {m.group(2)}'
            if t.startswith('buffer_store') and os.environ.get('STSC') and 's[96:99]' not in t: t += ' ' + os.environ['STSC']
            ins = Ins(t)
            if self.autopad:
                k = self._pad_needed(ins, self.lines)
                while k > 0:
                    m = min(k, 16)
                    self.lines.append(Ins(f's_nop {m-1}')); k -= m; self.npad += 1
            self.lines.append(ins)
    @staticmethod
    def _pad_needed(ins, hist):
        d = 0; k = 0
        for p in reversed(hist):
            if not isinstance(p, Ins): continue
            if d >= 20: break
            n = need(p, ins)
            if n > d: k = max(k, n - d)
            d += p.states()
        return k
    def check_backedge(self, head_label, branch_idx=None):
        i0 = self.lines.index(head_label + ':')
        body = [l for l in self.lines[i0+1:] if isinstance(l, Ins)]
        hist = list(body)
        bad = []
        for ins in body[:24]:
            k = self._pad_needed(ins, hist)
            if k > 0: bad.append((ins.text, k))
            hist.append(ins)
        assert not bad, f"backedge hazards at {head_label}: {bad}"
    def text(self):
        out = []
        for l in self.lines:
            out.append(('    ' + l.text) if isinstance(l, Ins) else l)
        return '\n'.join(out) + '\n'

def vr(a, n=1):
    return f'v{a}' if n == 1 else f'v[{a}:{a+n-1}]'
def sr(a, n=1):
    return f's{a}' if n == 1 else f's[{a}:{a+n-1}]'
def ar(a, n=1):
    return f'a{a}' if n == 1 else f'a[{a}:{a+n-1}]'
```

```python
from asmlib import *
from layout import *
from stamp import Stamps
import struct, os

def interleave(a, mf, fill):
    n = len(mf); k = len(fill); j = 0
    for i, m in enumerate(mf):
        a(m)
        upto = (k * (i + 1) + n - 1) // n
        while j < upto:
            a(fill[j]); j += 1

QS = 20 ** -0.5 * 1.4426950408889634
def f2u(f): return struct.unpack('<I', struct.pack('<f', f))[0]
SC = 131072
K1_LDS = SC + 1536
PF0 = int(os.environ.get('PF0', 3))
ROT1 = int(os.environ.get('ROT1', 3)); ROT1N = int(os.environ.get('ROT1N', 1))
DPP = "row_mask:0xf bank_mask:0xf"
def gen_k1(a, name):
    a.raw(f".p2align 8\n.globl {name}\n.type {name},@function\n{name}:")
    a(f"""
    s_load_dwordx4 s[4:7], s[0:1], 0
    s_load_dwordx2 s[8:9], s[0:1], 72
    s_cmp_ge_u32 s2, 240
    s_cbranch_scc1 L_k1_end
    """)
    st = Stamps(a, 0, 8); st(real=True); st()
    a(f"""
    v_lshrrev_b32 v2, 6, v0
    v_and_b32 v1, 63, v0
    s_and_b32 s10, s2, 7
    v_readfirstlane_b32 s24, v2
    s_lshr_b32 s11, s2, 3
    s_and_b32 s33, s10, 1
    s_mul_i32 s33, s33, 30
    s_add_u32 s33, s33, s11
    s_lshr_b32 s26, s33, 2
    s_and_b32 s45, s33, 3
    s_lshr_b32 s10, s10, 1
    s_lshl_b32 s10, s10, 2
    s_add_u32 s25, s10, s45
    s_mov_b32 s14, {2048*640*2}
    s_mov_b32 s15, 0x20000
    s_mov_b32 s18, {640*1920*2}
    s_mov_b32 s19, 0x20000
    v_lshrrev_b32 v11, 4, v1
    s_mul_i32 s27, s25, 163840
    s_lshl_b32 s28, s26, 8
    s_cmp_lt_u32 s24, 4
    s_cbranch_scc1 L_k1_compute
    s_sub_u32 s24, s24, 4
    """)
    a(f"""
    v_lshrrev_b32 v10, 3, v1
    s_lshl_b32 s33, s24, 5
    v_add_u32 v10, s33, v10
    v_mul_u32_u24 v10, 1280, v10
    v_and_b32 v12, 7, v1
    v_xor_b32 v12, v12, v11
    v_lshl_add_u32 v2, v12, 4, v10
    v_xor_b32 v12, 4, v12
    v_lshl_add_u32 v3, v12, 4, v10
    v_add_u32 v3, 9216, v3
    v_add_u32 v4, 18432, v2
    v_add_u32 v5, 18432, v3
    s_lshl_b32 s33, s24, 4
    v_add_u32 v13, s33, v11
    v_mul_u32_u24 v13, 3840, v13
    v_lshlrev_b32 v14, 2, v11
    v_and_b32 v12, 15, v1
    v_xor_b32 v12, v12, v14
    v_lshl_add_u32 v6, v12, 4, v13
    v_add_u32 v7, 14336, v6
    v_add_u32 v8, 28672, v6
    v_add_u32 v9, 43008, v6
    s_lshl_b32 s34, s24, 12
    s_add_u32 s35, s34, 16384
    s_mul_i32 s46, s45, {ROT1}
    s_mul_i32 s47, s26, {ROT1N}
    s_add_u32 s46, s46, s47
    s_mul_i32 s47, s46, 205
    s_lshr_b32 s47, s47, 11
    s_mul_i32 s47, s47, 10
    s_sub_u32 s46, s46, s47
    s_lshl_b32 s47, s46, 7
    s_add_u32 s27, s27, s47
    s_mul_i32 s47, s46, {64*3840}
    s_add_u32 s28, s28, s47
    s_setprio 2
    s_waitcnt lgkmcnt(0)
    s_mov_b32 s12, s4
    s_mov_b32 s13, s5
    s_mov_b32 s16, s6
    s_mov_b32 s17, s7
    """)
    def D(slot):
        l = [f"s_add_u32 m0, s34, {slot}"]
        l += [f"buffer_load_dwordx4 v{2+i}, s[12:15], s27 offen offset:{1024*i} lds" for i in range(4)]
        l += [f"s_add_u32 m0, s35, {slot}"]
        w = [f"buffer_load_dwordx4 v{6+i}, s[16:19], s28 offen offset:{1024*i} lds" for i in range(4)]
        l += [w[0], "s_add_u32 s46, s46, 1", "s_cmp_eq_u32 s46, 10", "s_cselect_b32 s46, 0, s46", f"s_cselect_b32 s47, {(-9*128) & 0xffffffff}, 128", f"s_cselect_b32 s48, {(-9*64*3840) & 0xffffffff}, {64*3840}", "s_add_u32 s27, s27, s47"] + w[1:]
        l += ["s_add_u32 s28, s28, s48"]
        return l
    slots = (0, 0x8000, 0x18000, 0x10000)
    for t in D(slots[0]): a(t)
    d1 = D(slots[1])
    for t in d1[:5]: a(t)
    a("s_waitcnt vmcnt(4)")
    a("s_barrier")
    for t in d1[5:]: a(t)
    for t in D(slots[2]): a(t)
    a("s_waitcnt vmcnt(8)")
    a("s_barrier")
    for t in D(slots[3]): a(t)
    for t in D(slots[0]): a(t)
    for s_ in range(2, 10):
        dd = D(slots[(s_ - 1) % 4])
        if s_ + 3 <= 9: a(dd[0])
        a(f"s_waitcnt vmcnt({8*min(2, 9-s_)})")
        a("s_barrier")
        if s_ + 3 <= 9:
            for t in dd[1:]: a(t)
    a("s_endpgm")
    a.label("L_k1_compute")
    st()
    a(f"""
    s_setprio 3
    s_lshr_b32 s36, s24, 1
    s_and_b32 s37, s24, 1
    v_and_b32 v56, 31, v1
    v_lshrrev_b32 v57, 5, v1
    v_lshrrev_b32 v58, 1, v56
    v_and_b32 v58, 7, v58
    v_xor_b32 v58, v58, v57
    s_lshl_b32 s33, s36, 13
    s_lshl_b32 s38, s37, 12
    s_add_u32 s33, s33, s38
    v_lshlrev_b32 v59, 7, v56
    v_add_u32 v59, s33, v59
    """)
    for ks in range(4):
        a(f"v_xor_b32 v60, {2*ks}, v58")
        a(f"v_lshl_add_u32 v{10+ks}, v60, 4, v59")
        a(f"v_xor_b32 v{14+ks}, 4096, v{10+ks}")
    a(f"""
    v_bfe_u32 v60, v1, 2, 2
    v_lshl_add_u32 v61, v57, 3, v60
    v_lshlrev_b32 v61, 8, v61
    v_bfe_u32 v62, v1, 4, 1
    v_bfe_u32 v63, v1, 1, 1
    v_lshl_add_u32 v62, v62, 1, v63
    s_lshl_b32 s33, s37, 1
    s_add_u32 s33, s33, s36
    v_xor_b32 v60, s33, v60
    v_lshl_add_u32 v62, v60, 2, v62
    v_lshl_add_u32 v61, v62, 4, v61
    v_and_b32 v63, 1, v1
    v_lshl_add_u32 v61, v63, 3, v61
    v_add_u32 v18, 16384, v61
    v_xor_b32 v19, 64, v18
    s_mov_b32 s29, 0
    s_mov_b32 s31, 0x8000
    s_mov_b32 s22, {2*KV_SIZE}
    s_mov_b32 s23, 0x20000
    s_lshl_b32 s39, s36, 8
    s_lshl_b32 s33, s37, 7
    s_add_u32 s39, s39, s33
    s_lshl_b32 s40, s37, 8
    s_lshl_b32 s33, s36, 7
    s_add_u32 s40, s40, s33
    v_mov_b32 v152, 0x3f803f80
    v_mov_b32 v153, 0x3f803f80
    v_lshlrev_b32 v2, 2, v56
    v_lshlrev_b32 v3, 4, v57
    """)
    for i in range(64): a(f"v_mov_b32 v{64+i}, 0")
    for i in range(12): a(f"v_mov_b32 v{140+i}, 0")
    def dots(S):
        if os.environ.get("NOSTAT"): return ["s_nop 0"] * 6
        l = []
        for i in range(2):
            l += [f"v_mfma_f32_4x4x4_16b_bf16 v[140:143], v[{S+2*i}:{S+2*i+1}], v[152:153], v[140:143]",
                  f"v_mfma_f32_4x4x4_16b_bf16 v[144:147], v[{S+2*i}:{S+2*i+1}], v[{S+2*i}:{S+2*i+1}], v[144:147]",
                  f"v_mfma_f32_4x4x4_16b_bf16 v[148:151], v[{S+8+2*i}:{S+8+2*i+1}], v[152:153], v[148:151]"]
        return l
    def reads(ks, S):
        return [f"ds_read_b128 v[{S}:{S+3}], v{10+ks}",
             f"ds_read_b64_tr_b16 v[{S+8}:{S+9}], v18 offset:{(16*ks)*256}",
             f"ds_read_b64_tr_b16 v[{S+10}:{S+11}], v18 offset:{(16*ks+4)*256}",
             f"ds_read_b64_tr_b16 v[{S+12}:{S+13}], v19 offset:{(16*ks)*256}",
             f"ds_read_b64_tr_b16 v[{S+14}:{S+15}], v19 offset:{(16*ks+4)*256}",
             f"ds_read_b128 v[{S+4}:{S+7}], v{14+ks}"]
    def mfmas(S, vmode):
        l = []
        for tt, ft in ((0, 0), (0, 1), (1, 0), (1, 1)):
            acc = 64 + 16 * (2 * tt + ft)
            x = f"v[{S+4*tt}:{S+4*tt+3}]"; w = f"v[{S+8+4*ft}:{S+8+4*ft+3}]"
            A, B = (x, w) if vmode else (w, x)
            l.append(f"v_mfma_f32_32x32x16_bf16 v[{acc}:{acc+15}], {A}, {B}, v[{acc}:{acc+15}]")
        return l
    P, Q = 24, 40
    a("s_cmp_ge_u32 s26, 10")
    a("s_cbranch_scc1 L_k1_setupV")
    a(f"""
    s_cmp_lt_u32 s26, 5
    s_cselect_b32 s41, {QF_OFF}, {KV_OFF}
    s_cselect_b32 s33, 0, 5
    s_sub_u32 s33, s26, s33
    s_lshl_b32 s33, s33, 5
    s_lshl_b32 s38, s37, 4
    s_add_u32 s33, s33, s38
    s_lshl_b32 s38, s36, 3
    s_add_u32 s33, s33, s38
    s_mul_i32 s38, s25, 10240
    s_add_u32 s41, s41, s38
    s_lshl_b32 s38, s39, 1
    s_add_u32 s42, s41, s38
    s_xor_b32 s38, s38, 256
    s_add_u32 s43, s41, s38
    v_add_u32 v6, s33, v57
    v_lshlrev_b32 v7, 3, v56
    s_mov_b32 s44, {163840-5120}
    v_add_u32 v4, s39, v2
    v_add_u32 v4, {SC}, v4
    v_add_u32 v5, s40, v3
    v_add_u32 v5, {SC+1024}, v5
    """)
    for ft in range(2):
        for g in range(4):
            a(f"v_xor_b32 v8, {8*ft}, v6")
            if g: a(f"v_add_u32 v8, {2*g}, v8")
            a(f"v_mul_u32_u24 v9, 205, v8")
            a(f"v_lshrrev_b32 v9, 10, v9")
            a(f"v_lshl_add_u32 v8, v8, 10, v7")
            a(f"v_mad_u32_u24 v{128+4*ft+g}, v9, s44, v8")
    for vmode, L in ((0, "L_k1_loopQ"), (1, "L_k1_loopV")):
        if vmode:
            a.label("L_k1_setupV")
            a(f"""
            s_sub_u32 s33, s26, 10
            s_lshl_b32 s33, s33, 7
            s_lshr_b32 s38, s40, 2
            s_add_u32 s33, s33, s38
            v_add_u32 v6, s33, v56
            s_mul_i32 s41, s25, 10240
            s_add_u32 s41, s41, {KV_OFF+5120}
            s_lshr_b32 s38, s39, 7
            s_mul_i32 s42, s38, 1280
            s_add_u32 s42, s42, s41
            s_xor_b32 s38, s38, 1
            s_mul_i32 s43, s38, 1280
            s_add_u32 s43, s43, s41
            s_mov_b32 s44, {163840-320}
            v_mul_u32_u24 v7, 320, v57
            v_add_u32 v4, s40, v2
            v_add_u32 v4, {SC+1024}, v4
            v_add_u32 v5, s39, v3
            v_add_u32 v5, {SC}, v5
            """)
            for ft in range(2):
                a(f"v_xor_b32 v8, {32*ft}, v6")
                a(f"v_mul_u32_u24 v9, 3277, v8")
                a(f"v_lshrrev_b32 v9, 16, v9")
                a(f"v_lshl_add_u32 v8, v8, 4, v7")
                a(f"v_mad_u32_u24 v{128+ft}, v9, s44, v8")
        a("""
        s_waitcnt lgkmcnt(0)
        s_mov_b32 s20, s8
        s_mov_b32 s21, s9
        """)
        n0 = st.n
        st()
        a("s_barrier")
        st()
        for t in reads(0, P): a(t)
        a.raw(".p2align 6")
        a.label(L)
        for ks in range(3):
            cur, nxt = (P, Q) if ks % 2 == 0 else (Q, P)
            rd = reads(ks + 1, nxt); m = mfmas(cur, vmode); d = dots(cur)
            a(rd[0]); a(rd[1])
            a("s_waitcnt lgkmcnt(5)"); a(m[0]); a(rd[2]); a(rd[3])
            for t in d[:3]: a(t)
            a("s_waitcnt lgkmcnt(5)"); a(m[1]); a(rd[4]); a(rd[5])
            for t in d[3:]: a(t)
            a("s_waitcnt lgkmcnt(6)"); a(m[2]); a(f"v_xor_b32 v{10+ks}, s31, v{10+ks}"); a(f"v_xor_b32 v{14+ks}, s31, v{14+ks}")
            a(m[3])
        m = mfmas(Q, vmode); d = dots(Q)
        a("s_waitcnt lgkmcnt(3)"); a(m[0])
        a("v_xor_b32 v18, s31, v18"); a("v_xor_b32 v19, s31, v19")
        for t in d[:3]: a(t)
        a("s_waitcnt lgkmcnt(0)"); a(m[1])
        a("s_barrier")
        rd = reads(0, P)
        for t in rd[:3]: a(t)
        for t in d[3:]: a(t)
        a(m[2])
        for t in rd[3:]: a(t)
        a("v_xor_b32 v13, s31, v13"); a("v_xor_b32 v17, s31, v17")
        a(m[3])
        a(f"""
        s_xor_b32 s31, s31, 0x18000
        s_add_u32 s29, s29, 1
        s_cmp_lt_u32 s29, 10
        s_cbranch_scc1 {L}
        """)
        a.check_backedge(L)
        st()
        TA_, CA_ = ("v4", "v5") if not vmode else ("v5", "v4")
        a(f"""
        s_mov_b32 s46, 0x22222222
        s_mov_b32 s47, 0x22222222
        s_mov_b32 s48, 0x44444444
        s_mov_b32 s49, 0x44444444
        s_mov_b32 s50, 0x88888888
        s_mov_b32 s51, 0x88888888
        v_cndmask_b32 v20, v140, v141, s[46:47]
        v_cndmask_b32 v21, v144, v145, s[46:47]
        v_cndmask_b32 v22, v148, v149, s[46:47]
        v_cndmask_b32 v20, v20, v142, s[48:49]
        v_cndmask_b32 v21, v21, v146, s[48:49]
        v_cndmask_b32 v22, v22, v150, s[48:49]
        v_cndmask_b32 v20, v20, v143, s[50:51]
        v_cndmask_b32 v21, v21, v147, s[50:51]
        v_cndmask_b32 v22, v22, v151, s[50:51]
        v_mov_b32 v60, v20
        v_mov_b32 v61, v21
        v_mov_b32 v62, v22
        v_permlane32_swap_b32 v60, v20
        v_permlane32_swap_b32 v61, v21
        v_permlane32_swap_b32 v62, v22
        v_add_f32 v20, v20, v60
        v_add_f32 v21, v21, v61
        v_add_f32 v22, v22, v62
        v_mul_f32 v20, {f2u(-1.0/640):#x}, v20
        v_mul_f32 v21, {f2u(1.0/640):#x}, v21
        v_fma_f32 v21, -v20, v20, v21
        v_max_f32 v21, 0, v21
        v_add_f32 v21, {f2u(1e-5):#x}, v21
        v_rsq_f32 v21, v21
        v_add_u32 v60, s39, v2
        v_add_u32 v61, s40, v2
        v_add_u32 v60, {SC}, v60
        v_add_u32 v61, {SC+1024}, v61
        s_cmp_lt_u32 s26, 5
        s_cselect_b32 s33, {f2u(QS):#x}, 1.0
        v_mul_f32 v21, s33, v21
        ds_write_b32 v60, v21
        ds_write_b32 v60, v20 offset:512
        ds_write_b32 v61, v22
        v_xor_b32 v6, 128, v4
        v_xor_b32 v7, 128, v5
        s_waitcnt lgkmcnt(0)
        s_barrier
        """)
        st()
        if not vmode:
            for tt in range(2):
                a(f"ds_read_b32 v{136+2*tt}, v{4+2*tt}")
                a(f"ds_read_b32 v{137+2*tt}, v{4+2*tt} offset:512")
            for ft in range(2):
                for g in range(4):
                    r = 24 + 16 * ft + 4 * g
                    a(f"ds_read_b128 v[{r}:{r+3}], v{5+2*ft} offset:{32*g}")
            for ft in range(2):
                a(f"s_waitcnt lgkmcnt({4*(1-ft)})")
                for tt in range(2):
                    am = 136 + 2 * tt
                    acc = 64 + 16 * (2 * tt + ft)
                    for g in range(4):
                        for p in range(2):
                            r = acc + 4 * g + 2 * p; c = 24 + 16 * ft + 4 * g + 2 * p
                            a(f"v_pk_fma_f32 v[{r}:{r+1}], v[{c}:{c+1}], v[{am}:{am+1}], v[{r}:{r+1}] op_sel:[0,1,0] op_sel_hi:[1,1,1]")
                        for p in range(2):
                            r = acc + 4 * g + 2 * p
                            a(f"v_pk_mul_f32 v[{r}:{r+1}], v[{r}:{r+1}], v[{am}:{am+1}] op_sel:[0,0] op_sel_hi:[1,0]")
                        r = acc + 4 * g
                        a(f"v_cvt_pk_bf16_f32 v{r}, v{r}, v{r+1}")
                        a(f"v_cvt_pk_bf16_f32 v{r+1}, v{r+2}, v{r+3}")
                        a(f"buffer_store_dwordx2 v[{r}:{r+1}], v{128+4*ft+g}, s[20:23], s{42+tt} offen")
            st(); a("s_waitcnt vmcnt(0)") if os.environ.get("STAMP") else None; st(); st.flush(2, 24)
            a("s_endpgm")
            st.n = n0
        else:
            a(f"ds_read_b32 v130, v4")
            a(f"ds_read_b32 v132, v6")
            for tt in range(2):
                B = (24, 136)[tt]
                for g in range(4):
                    a(f"ds_read_b128 v[{B+4*g}:{B+4*g+3}], v{5+2*tt} offset:{32*g}")
                    a(f"ds_read_b128 v[{B+16+4*g}:{B+19+4*g}], v{5+2*tt} offset:{512+32*g}")
            for tt in range(2):
                B = (24, 136)[tt]
                a(f"s_waitcnt lgkmcnt({8*(1-tt)})")
                for ft in range(2):
                    acc = 64 + 16 * (2 * tt + ft)
                    cs = 130 + 2 * ft
                    for j in range(2):
                        for p in range(4):
                            r = acc + 8 * j + 2 * p; m_ = B + 16 + 8 * j + 2 * p
                            a(f"v_pk_fma_f32 v[{r}:{r+1}], v[{m_}:{m_+1}], v[{cs}:{cs+1}], v[{r}:{r+1}] op_sel:[0,0,0] op_sel_hi:[1,0,1]")
                        for p in range(4):
                            r = acc + 8 * j + 2 * p; m_ = B + 8 * j + 2 * p
                            a(f"v_pk_mul_f32 v[{r}:{r+1}], v[{r}:{r+1}], v[{m_}:{m_+1}]")
                        r = acc + 8 * j
                        for p in range(4):
                            a(f"v_cvt_pk_bf16_f32 v{r+p}, v{r+2*p}, v{r+2*p+1}")
                        a(f"buffer_store_dwordx4 v[{r}:{r+3}], v{128+ft}, s[20:23], s{42+tt} offen offset:{640*j}")
            st(); a("s_waitcnt vmcnt(0)") if os.environ.get("STAMP") else None; st(); st.flush(2, 24)
    a.label("L_k1_end")
    a("s_endpgm")
    return dict(name=name, vgpr=168, sgpr=100, grid=240, block=512, lds=K1_LDS)
```

```python
import numpy as np
S, D, H, DH, F = 2048, 640, 32, 20, 1728
KV_OFF = 0
KV_SIZE = 32 * 163840
QF_OFF = KV_OFF + KV_SIZE
OF_OFF = QF_OFF + KV_SIZE
FR_SIZE = 64 * 80 * 512
HF_OFF = OF_OFF + FR_SIZE
ST_OFF = HF_OFF + FR_SIZE
ST_SIZE = 2048 * 8 * 8
AF_OFF = ST_OFF + ST_SIZE
AF_SIZE = 64 * 216 * 512
WGU_OFF = AF_OFF + AF_SIZE
WGU_SIZE = 16 * 10 * 28672
WD_OFF = WGU_OFF + WGU_SIZE
WD_SIZE = 8 * 27 * 10240
WO_OFF = WD_OFF + WD_SIZE
WO_SIZE = 8 * 10 * 10240
CSP_OFF = WO_OFF + WO_SIZE
CSP_SIZE = 16 * 13824
WS_USED = CSP_OFF + CSP_SIZE

def decode_qkv(ws):
    kv = ws[KV_OFF // 2:(KV_OFF + KV_SIZE) // 2].reshape(32, 16, 2, 2560)
    qf = ws[QF_OFF // 2:(QF_OFF + KV_SIZE) // 2].reshape(32, 16, 2, 2560)
    def kq(a):
        a = a.reshape(32, 16, 5, 128, 4).transpose(1, 3, 0, 2, 4).reshape(2048, 640); return a
    k = kq(kv[:, :, 0]); q = kq(qf[:, :, 0])
    v = kv[:, :, 1].reshape(32, 16, 4, 2, 2, 20, 2, 4)
    v = v.transpose(1, 2, 3, 6, 4, 7, 0, 5).reshape(2048, 640)
    return q, k, v

def o_perm():
    p = np.zeros((80, 8), dtype=np.int64)
    for kk in range(80):
        for e in range(8):
            if kk < 64:
                hd, h = kk >> 1, kk & 1
                p[kk, e] = 20 * hd + 4 * h + (e & 3) + 8 * (e >> 2)
            else:
                pp = kk - 64
                p[kk, e] = 40 * pp + 16 + (e & 3) + 20 * (e >> 2)
    return p.reshape(-1)

def decode_frag(ws, off, n):
    a = ws[off // 2: off // 2 + 2048 * n].reshape(64, n // 8, 32, 8).transpose(0, 2, 1, 3).reshape(2048, n)
    return a

def decode_o(ws):
    a = decode_frag(ws, OF_OFF, 640)
    o = np.empty_like(a); o[:, o_perm()] = a
    return o
```

```python
import sys
sys.path.insert(0, "dev")
from asmlib import *
import importlib
HDR = open("sequential_preLN__softmax_full_mha__geglu_ffn__prompt.s.ref").read().split("; Override launch")[0]
def build(kernels, out):
    a = Asm()
    infos = []
    for fn, name in kernels:
        infos.append(fn(a, name))
    s = HDR
    import os
    order = list(infos)
    if os.environ.get("DUP"):
        order = []
        for i in infos:
            order.append(i)
            if i['name'][:2] in os.environ["DUP"].split(","): order.append(i)
    for i in order:
        s += f"; @launch kernel={i['name']} grid=({i['grid']},1,1) block=({i['block']},1,1) lds={i['lds']}\n"
    s += '.amdgcn_target "amdgcn-amd-amdhsa--gfx950"\n.text\n'
    s += a.text()
    s += '.section .rodata,"a"\n'
    for i in infos:
        v = i['vgpr']; acc = i.get('accum', (v + 3) // 4 * 4)
        s += f""".p2align 6
.amdhsa_kernel {i['name']}
  .amdhsa_next_free_vgpr {v}
  .amdhsa_next_free_sgpr {i['sgpr']}
  .amdhsa_accum_offset {acc}
  .amdhsa_group_segment_fixed_size 0
  .amdhsa_kernarg_size 80
  .amdhsa_user_sgpr_count 2
  .amdhsa_user_sgpr_kernarg_segment_ptr 1
  .amdhsa_system_sgpr_workgroup_id_x 1
.end_amdhsa_kernel
"""
    open(out, "w").write(s)
    print("wrote", out, "autopads:", a.npad, "lines:", len(a.lines))
if __name__ == "__main__":
    from k1 import gen_k1
    ks = [(gen_k1, "k1_kernel")]
    for mod, fn, nm in (("k2", "gen_k2", "k2_kernel"), ("k35", "gen_k3", "k3_kernel"), ("k4", "gen_k4", "k4_kernel"), ("k35", "gen_k5", "k5_kernel")):
        try:
            m = importlib.import_module(mod)
        except ImportError:
            break
        ks.append((getattr(m, fn), nm))
    build(ks, sys.argv[1] if len(sys.argv) > 1 else "out.s")
```

```python
import re, os

REG_RE = re.compile(r'^(-?)(abs\()?([vsa])(?:(\d+)|\[(\d+):(\d+)\])\)?$')

def regs_of(op):
    op = op.strip()
    if op in ('vcc', 'vcc_lo', 'vcc_hi'): return {('s', 'vcc')}
    if op in ('exec', 'exec_lo', 'exec_hi'): return {('s', 'exec')}
    if op == 'm0': return {('s', 'm0')}
    m = REG_RE.match(op)
    if not m: return set()
    k = m.group(3)
    if m.group(4) is not None:
        return {(k, int(m.group(4)))}
    return {(k, i) for i in range(int(m.group(5)), int(m.group(6)) + 1)}

TRANS = ('v_exp_', 'v_log_', 'v_rcp_', 'v_rsq_', 'v_sqrt_', 'v_sin_', 'v_cos_')

class Ins:
    def __init__(self, text):
        self.text = text
        t = text.split(';')[0].strip()
        self.raw = t
        parts = t.split(None, 1)
        self.op = parts[0] if parts else ''
        rest = parts[1] if len(parts) > 1 else ''
        ops = [o.strip() for o in rest.split(',')] if rest else []
        self.mods = ''
        if ops:
            last = ops[-1].split()
            if len(last) > 1:
                ops[-1] = last[0]; self.mods = ' '.join(last[1:])
        self.ops = ops
        op = self.op
        self.is_mfma = op.startswith('v_mfma')
        self.is_valu = op.startswith('v_') and not self.is_mfma
        self.is_trans = op.startswith(TRANS)
        self.is_dot = op.startswith('v_dot')
        self.is_ds = op.startswith('ds_')
        self.is_vmem = op.startswith(('buffer_', 'global_'))
        self.is_salu = op.startswith('s_')
        self.is_dpp = ('row_' in self.mods or 'quad_perm' in self.mods or 'wave_' in self.mods or op.endswith('_dpp'))
        self.is_perm = op.startswith('v_permlane')
        self.is_sdwa = op.endswith('_sdwa') or ('op_sel' in self.mods and not op.startswith('v_pk_'))
        self.w = set(); self.r = set()
        self.srcC = set(); self.srcAB = set()
        self.passes = 0
        R = [regs_of(o) for o in ops]
        if self.is_mfma:
            self.w = R[0]; self.srcAB = R[1] | R[2]; self.srcC = R[3]; self.r = self.srcAB | self.srcC
            if '32x32x16' in op or '32x32x8' in op: self.passes = 8
            elif '16x16x32' in op or '16x16x16' in op: self.passes = 4
            elif '4x4x4' in op: self.passes = 2
            else: raise ValueError(op)
        elif self.is_valu:
            if op.startswith('v_cmp'):
                self.w = R[0]; self.r = set().union(*R[1:])
            elif op.startswith(('v_add_co', 'v_addc_co', 'v_sub_co', 'v_subb_co')):
                self.w = R[0] | R[1]; self.r = set().union(*R[2:])
            elif self.is_perm and 'swap' in op:
                self.w = R[0] | R[1]; self.r = R[0] | R[1]
            else:
                self.w = R[0]; self.r = set().union(*R[1:]) if len(R) > 1 else set()
                if op.startswith(('v_fmac', 'v_dot2c', 'v_pk_fmac')) or 'UNUSED_PRESERVE' in self.mods or self.is_dpp or op.startswith('v_writelane'):
                    self.r |= R[0]
                if op.startswith('v_cndmask') and len(ops) == 3: self.r |= {('s', 'vcc')}
        elif self.is_ds:
            if op.startswith(('ds_read', 'ds_bpermute', 'ds_permute', 'ds_swizzle')):
                self.w = R[0]; self.r = set().union(*R[1:])
            else:
                self.r = set().union(*R)
        elif self.is_vmem:
            lds = ' lds' in (' ' + self.mods) or '_lds_' in op
            self.is_dma = lds
            if 'load' in op and not lds:
                self.w = R[0]; self.r = set().union(*R[1:])
            else:
                self.r = set().union(*R)
                if lds: self.r |= {('s', 'm0')}
            self.store_data = set()
            if 'store' in op and ('x4' in op or 'x3' in op):
                self.store_data = R[0] if op.startswith('buffer') else R[1]
        elif self.is_salu:
            if op.startswith(('s_cmp', 's_waitcnt', 's_nop', 's_barrier', 's_branch', 's_cbranch', 's_endpgm', 's_setprio', 's_sleep', 's_bitcmp')):
                self.r = set().union(*R) if R else set()
            else:
                self.w = R[0] if R else set(); self.r = set().union(*R[1:]) if len(R) > 1 else set()
                if 'saveexec' in op: self.w |= {('s', 'exec')}
    def states(self):
        if self.op == 's_nop': return int(self.ops[0], 0) + 1
        return 1

XDL_RAW = {2: 5, 4: 8, 8: 12, 16: 20}
XDL_COVL = {2: 4, 4: 6, 8: 10, 16: 18}
XDL_CWAR = {2: 1, 4: 3, 8: 7, 16: 15}

def need(p, c):
    n = 0
    isv = lambda s: {x for x in s if x[0] in 'va'}
    iss = lambda s: {x for x in s if x[0] == 's'}
    if p.is_valu:
        pw = isv(p.w)
        if c.is_mfma and pw & c.r: n = max(n, 2)
        if p.is_trans and c.is_valu and not c.is_trans and pw & c.r: n = max(n, 1)
        if p.is_trans and (c.is_valu and c.is_trans) and pw & c.r: n = max(n, 1)
        if c.op.startswith(('v_readfirstlane', 'v_readlane')) and pw & c.r: n = max(n, 1)
        if (c.is_perm or c.is_dpp) and pw & c.r: n = max(n, 2)
        if p.is_sdwa and c.is_valu and pw & (c.r | c.w): n = max(n, 1)
        if p.is_dot and (c.is_valu or c.is_mfma or c.is_vmem or c.is_ds) and pw & (c.r | c.w):
            if c.op == p.op and not (pw & set().union(*[regs_of(o) for o in c.ops[1:]])): pass
            else: n = max(n, 3)
        sw = iss(p.w)
        if sw:
            if c.is_valu and sw & c.r: n = max(n, 4 if c.op.startswith(('v_readlane', 'v_writelane')) else 2)
            if c.is_vmem and sw & c.r: n = max(n, 5)
            if c.is_salu and sw & c.r: n = max(n, 1)
            if ('s', 'exec') in sw: n = max(n, 5)
    if p.is_mfma:
        if c.is_mfma:
            if p.w & c.srcAB: n = max(n, XDL_RAW[p.passes])
            if p.w & c.srcC:
                if p.w == c.srcC and p.passes == c.passes: n = max(n, 2 if p.passes == 2 else 0)
                else: n = max(n, XDL_COVL[p.passes])
            elif p.w & c.w:
                n = max(n, XDL_COVL[p.passes])
        elif c.is_valu or c.is_vmem or c.is_ds:
            if p.w & (c.r | c.w): n = max(n, XDL_RAW[p.passes])
            if c.is_valu and p.srcC & c.w: n = max(n, XDL_CWAR[p.passes])
    if p.is_salu and ('s', 'm0') in p.w and c.is_vmem and getattr(c, 'is_dma', False): n = max(n, 1)
    if p.is_vmem and getattr(p, 'store_data', None):
        if p.store_data & c.w: n = max(n, 2 if c.is_valu else 1)
    return n

class Asm:
    def __init__(self):
        self.lines = []
        self.autopad = True
        self.npad = 0
    def raw(self, s): self.lines.append(s)
    def label(self, name): self.lines.append(name + ':')
    def comment(self, s): self.lines.append('    ; ' + s)
    def __call__(self, text):
        for t in text.strip().split('\n'):
            t = t.strip()
            if not t or t.startswith(';'): continue
            m = re.match(r's_cselect_b32 (\S+), (\d+), (\d+)$', t)
            if m and int(m.group(2)) > 64 and int(m.group(3)) > 64:
                self(f's_mov_b32 {m.group(1)}, {m.group(3)}'); t = f's_cmov_b32 {m.group(1)}, {m.group(2)}'
            if t.startswith('buffer_store') and os.environ.get('STSC') and 's[96:99]' not in t: t += ' ' + os.environ['STSC']
            ins = Ins(t)
            if self.autopad:
                k = self._pad_needed(ins, self.lines)
                while k > 0:
                    m = min(k, 16)
                    self.lines.append(Ins(f's_nop {m-1}')); k -= m; self.npad += 1
            self.lines.append(ins)
    @staticmethod
    def _pad_needed(ins, hist):
        d = 0; k = 0
        for p in reversed(hist):
            if not isinstance(p, Ins): continue
            if d >= 20: break
            n = need(p, ins)
            if n > d: k = max(k, n - d)
            d += p.states()
        return k
    def check_backedge(self, head_label, branch_idx=None):
        i0 = self.lines.index(head_label + ':')
        body = [l for l in self.lines[i0+1:] if isinstance(l, Ins)]
        hist = list(body)
        bad = []
        for ins in body[:24]:
            k = self._pad_needed(ins, hist)
            if k > 0: bad.append((ins.text, k))
            hist.append(ins)
        assert not bad, f"backedge hazards at {head_label}: {bad}"
    def text(self):
        out = []
        for l in self.lines:
            out.append(('    ' + l.text) if isinstance(l, Ins) else l)
        return '\n'.join(out) + '\n'

def vr(a, n=1):
    return f'v{a}' if n == 1 else f'v[{a}:{a+n-1}]'
def sr(a, n=1):
    return f's{a}' if n == 1 else f's[{a}:{a+n-1}]'
def ar(a, n=1):
    return f'a{a}' if n == 1 else f'a[{a}:{a+n-1}]'


CODE_SIZES = {}
_pfn = [0]
def code_prefetch(a, target, vtmp, sp, vlane16):
    if os.environ.get("NOCPF"): return
    n = (CODE_SIZES.get(target, 4096) + 1023) // 1024
    _pfn[0] += 1
    L = f"L_cpf{_pfn[0]}"
    a(f"s_getpc_b64 s[{sp}:{sp+1}]")
    a.label(L)
    a(f"s_add_u32 s{sp}, s{sp}, {target}-{L}")
    a(f"s_addc_u32 s{sp+1}, s{sp+1}, {'-1' if target <= a.cur else '0'}")
    for i in range(n):
        if i and i % 4 == 0:
            a(f"s_add_u32 s{sp}, s{sp}, 4096"); a(f"s_addc_u32 s{sp+1}, s{sp+1}, 0")
        a(f"global_load_dwordx4 v[{vtmp}:{vtmp+3}], v{vlane16}, s[{sp}:{sp+1}] offset:{1024*(i%4)}")
```

```python
from asmlib import *
from layout import *
from stamp import Stamps
import struct, os

def interleave(a, mf, fill):
    n = len(mf); k = len(fill); j = 0
    for i, m in enumerate(mf):
        a(m)
        upto = (k * (i + 1) + n - 1) // n
        while j < upto:
            a(fill[j]); j += 1

QS = 20 ** -0.5 * 1.4426950408889634
def f2u(f): return struct.unpack('<I', struct.pack('<f', f))[0]
SC = 131072
K1_LDS = SC + 1536
PF0 = int(os.environ.get('PF0', 3))
ROT1 = int(os.environ.get('ROT1', 3)); ROT1N = int(os.environ.get('ROT1N', 1))
DPP = "row_mask:0xf bank_mask:0xf"
def gen_k1(a, name):
    a.raw(f".p2align 8\n.globl {name}\n.type {name},@function\n{name}:")
    a(f"""
    s_load_dwordx4 s[4:7], s[0:1], 0
    s_load_dwordx2 s[8:9], s[0:1], 72
    s_cmp_ge_u32 s2, 240
    s_cbranch_scc1 L_k1_side
    """)
    st = Stamps(a, 0, 8); st(real=True); st()
    a(f"""
    v_lshrrev_b32 v2, 6, v0
    v_and_b32 v1, 63, v0
    s_and_b32 s10, s2, 7
    v_readfirstlane_b32 s24, v2
    s_lshr_b32 s11, s2, 3
    s_and_b32 s33, s10, 1
    s_mul_i32 s33, s33, 30
    s_add_u32 s33, s33, s11
    s_lshr_b32 s26, s33, 2
    s_and_b32 s45, s33, 3
    s_lshr_b32 s10, s10, 1
    s_lshl_b32 s10, s10, 2
    s_add_u32 s25, s10, s45
    s_mov_b32 s14, {2048*640*2}
    s_mov_b32 s15, 0x20000
    s_mov_b32 s18, {640*1920*2}
    s_mov_b32 s19, 0x20000
    v_lshrrev_b32 v11, 4, v1
    s_mul_i32 s27, s25, 163840
    s_lshl_b32 s28, s26, 8
    s_cmp_lt_u32 s24, 4
    s_cbranch_scc1 L_k1_compute
    s_sub_u32 s24, s24, 4
    """)
    a(f"""
    v_lshrrev_b32 v10, 3, v1
    s_lshl_b32 s33, s24, 5
    v_add_u32 v10, s33, v10
    v_mul_u32_u24 v10, 1280, v10
    v_and_b32 v12, 7, v1
    v_xor_b32 v12, v12, v11
    v_lshl_add_u32 v2, v12, 4, v10
    v_xor_b32 v12, 4, v12
    v_lshl_add_u32 v3, v12, 4, v10
    v_add_u32 v3, 9216, v3
    v_add_u32 v4, 18432, v2
    v_add_u32 v5, 18432, v3
    s_lshl_b32 s33, s24, 4
    v_add_u32 v13, s33, v11
    v_mul_u32_u24 v13, 3840, v13
    v_lshlrev_b32 v14, 2, v11
    v_and_b32 v12, 15, v1
    v_xor_b32 v12, v12, v14
    v_lshl_add_u32 v6, v12, 4, v13
    v_add_u32 v7, 14336, v6
    v_add_u32 v8, 28672, v6
    v_add_u32 v9, 43008, v6
    s_lshl_b32 s34, s24, 12
    s_add_u32 s35, s34, 16384
    s_mul_i32 s46, s45, {ROT1}
    s_mul_i32 s47, s26, {ROT1N}
    s_add_u32 s46, s46, s47
    s_mul_i32 s47, s46, 205
    s_lshr_b32 s47, s47, 11
    s_mul_i32 s47, s47, 10
    s_sub_u32 s46, s46, s47
    s_lshl_b32 s47, s46, 7
    s_add_u32 s27, s27, s47
    s_mul_i32 s47, s46, {64*3840}
    s_add_u32 s28, s28, s47
    s_setprio 2
    s_waitcnt lgkmcnt(0)
    s_mov_b32 s12, s4
    s_mov_b32 s13, s5
    s_mov_b32 s16, s6
    s_mov_b32 s17, s7
    """)
    def D(slot):
        l = [f"s_add_u32 m0, s34, {slot}"]
        l += [f"buffer_load_dwordx4 v{2+i}, s[12:15], s27 offen offset:{1024*i} lds" for i in range(4)]
        l += [f"s_add_u32 m0, s35, {slot}"]
        w = [f"buffer_load_dwordx4 v{6+i}, s[16:19], s28 offen offset:{1024*i} lds" for i in range(4)]
        l += [w[0], "s_add_u32 s46, s46, 1", "s_cmp_eq_u32 s46, 10", "s_cselect_b32 s46, 0, s46", f"s_cselect_b32 s47, {(-9*128) & 0xffffffff}, 128", f"s_cselect_b32 s48, {(-9*64*3840) & 0xffffffff}, {64*3840}", "s_add_u32 s27, s27, s47"] + w[1:]
        l += ["s_add_u32 s28, s28, s48"]
        return l
    slots = (0, 0x8000, 0x18000, 0x10000)
    for t in D(slots[0]): a(t)
    d1 = D(slots[1])
    for t in d1[:5]: a(t)
    a("s_waitcnt vmcnt(4)")
    a("s_barrier")
    for t in d1[5:]: a(t)
    for t in D(slots[2]): a(t)
    a("s_waitcnt vmcnt(8)")
    a("s_barrier")
    for t in D(slots[3]): a(t)
    for t in D(slots[0]): a(t)
    for s_ in range(2, 10):
        dd = D(slots[(s_ - 1) % 4])
        if s_ + 3 <= 9: a(dd[0])
        a(f"s_waitcnt vmcnt({8*min(2, 9-s_)})")
        a("s_barrier")
        if s_ + 3 <= 9:
            for t in dd[1:]: a(t)
        if s_ == 7:
            a("v_lshlrev_b32 v20, 4, v1")
            a("s_cmp_lg_u32 s24, 0")
            a("s_cbranch_scc1 L_k1_nocpf2")
            a("s_waitcnt vmcnt(8)"); a("s_barrier"); a("s_waitcnt vmcnt(0)"); a("s_barrier")
            code_prefetch(a, "k2_kernel", 24, 46, 20)
            a("s_endpgm")
            a.label("L_k1_nocpf2")
    a("s_endpgm")
    a.label("L_k1_compute")
    st()
    a("v_lshlrev_b32 v20, 4, v1")
    a("s_cmp_lg_u32 s24, 0")
    a("s_cbranch_scc1 L_k1_nocpf")
    code_prefetch(a, "k1_kernel", 160, 46, 20)
    a.label("L_k1_nocpf")
    a(f"""
    s_setprio 3
    s_lshr_b32 s36, s24, 1
    s_and_b32 s37, s24, 1
    v_and_b32 v56, 31, v1
    v_lshrrev_b32 v57, 5, v1
    v_lshrrev_b32 v58, 1, v56
    v_and_b32 v58, 7, v58
    v_xor_b32 v58, v58, v57
    s_lshl_b32 s33, s36, 13
    s_lshl_b32 s38, s37, 12
    s_add_u32 s33, s33, s38
    v_lshlrev_b32 v59, 7, v56
    v_add_u32 v59, s33, v59
    """)
    for ks in range(4):
        a(f"v_xor_b32 v60, {2*ks}, v58")
        a(f"v_lshl_add_u32 v{10+ks}, v60, 4, v59")
        a(f"v_xor_b32 v{14+ks}, 4096, v{10+ks}")
    a(f"""
    v_bfe_u32 v60, v1, 2, 2
    v_lshl_add_u32 v61, v57, 3, v60
    v_lshlrev_b32 v61, 8, v61
    v_bfe_u32 v62, v1, 4, 1
    v_bfe_u32 v63, v1, 1, 1
    v_lshl_add_u32 v62, v62, 1, v63
    s_lshl_b32 s33, s37, 1
    s_add_u32 s33, s33, s36
    v_xor_b32 v60, s33, v60
    v_lshl_add_u32 v62, v60, 2, v62
    v_lshl_add_u32 v61, v62, 4, v61
    v_and_b32 v63, 1, v1
    v_lshl_add_u32 v61, v63, 3, v61
    v_add_u32 v18, 16384, v61
    v_xor_b32 v19, 64, v18
    s_mov_b32 s29, 0
    s_mov_b32 s31, 0x8000
    s_mov_b32 s22, {2*KV_SIZE}
    s_mov_b32 s23, 0x20000
    s_lshl_b32 s39, s36, 8
    s_lshl_b32 s33, s37, 7
    s_add_u32 s39, s39, s33
    s_lshl_b32 s40, s37, 8
    s_lshl_b32 s33, s36, 7
    s_add_u32 s40, s40, s33
    v_mov_b32 v152, 0x3f803f80
    v_mov_b32 v153, 0x3f803f80
    v_lshlrev_b32 v2, 2, v56
    v_lshlrev_b32 v3, 4, v57
    """)
    for i in range(64): a(f"v_mov_b32 v{64+i}, 0")
    for i in range(12): a(f"v_mov_b32 v{140+i}, 0")
    def dots(S):
        if os.environ.get("NOSTAT"): return ["s_nop 0"] * 6
        l = []
        for i in range(2):
            l += [f"v_mfma_f32_4x4x4_16b_bf16 v[140:143], v[{S+2*i}:{S+2*i+1}], v[152:153], v[140:143]",
                  f"v_mfma_f32_4x4x4_16b_bf16 v[144:147], v[{S+2*i}:{S+2*i+1}], v[{S+2*i}:{S+2*i+1}], v[144:147]",
                  f"v_mfma_f32_4x4x4_16b_bf16 v[148:151], v[{S+8+2*i}:{S+8+2*i+1}], v[152:153], v[148:151]"]
        return l
    def reads(ks, S):
        return [f"ds_read_b128 v[{S}:{S+3}], v{10+ks}",
             f"ds_read_b64_tr_b16 v[{S+8}:{S+9}], v18 offset:{(16*ks)*256}",
             f"ds_read_b64_tr_b16 v[{S+10}:{S+11}], v18 offset:{(16*ks+4)*256}",
             f"ds_read_b64_tr_b16 v[{S+12}:{S+13}], v19 offset:{(16*ks)*256}",
             f"ds_read_b64_tr_b16 v[{S+14}:{S+15}], v19 offset:{(16*ks+4)*256}",
             f"ds_read_b128 v[{S+4}:{S+7}], v{14+ks}"]
    def mfmas(S, vmode):
        l = []
        for tt, ft in ((0, 0), (0, 1), (1, 0), (1, 1)):
            acc = 64 + 16 * (2 * tt + ft)
            x = f"v[{S+4*tt}:{S+4*tt+3}]"; w = f"v[{S+8+4*ft}:{S+8+4*ft+3}]"
            A, B = (x, w) if vmode else (w, x)
            l.append(f"v_mfma_f32_32x32x16_bf16 v[{acc}:{acc+15}], {A}, {B}, v[{acc}:{acc+15}]")
        return l
    P, Q = 24, 40
    a("s_cmp_ge_u32 s26, 10")
    a("s_cbranch_scc1 L_k1_setupV")
    a(f"""
    s_cmp_lt_u32 s26, 5
    s_cselect_b32 s41, {QF_OFF}, {KV_OFF}
    s_cselect_b32 s33, 0, 5
    s_sub_u32 s33, s26, s33
    s_lshl_b32 s33, s33, 5
    s_lshl_b32 s38, s37, 4
    s_add_u32 s33, s33, s38
    s_lshl_b32 s38, s36, 3
    s_add_u32 s33, s33, s38
    s_mul_i32 s38, s25, 10240
    s_add_u32 s41, s41, s38
    s_lshl_b32 s38, s39, 1
    s_add_u32 s42, s41, s38
    s_xor_b32 s38, s38, 256
    s_add_u32 s43, s41, s38
    v_add_u32 v6, s33, v57
    v_lshlrev_b32 v7, 3, v56
    s_mov_b32 s44, {163840-5120}
    v_add_u32 v4, s39, v2
    v_add_u32 v4, {SC}, v4
    v_add_u32 v5, s40, v3
    v_add_u32 v5, {SC+1024}, v5
    """)
    for ft in range(2):
        for g in range(4):
            a(f"v_xor_b32 v8, {8*ft}, v6")
            if g: a(f"v_add_u32 v8, {2*g}, v8")
            a(f"v_mul_u32_u24 v9, 205, v8")
            a(f"v_lshrrev_b32 v9, 10, v9")
            a(f"v_lshl_add_u32 v8, v8, 10, v7")
            a(f"v_mad_u32_u24 v{128+4*ft+g}, v9, s44, v8")
    for vmode, L in ((0, "L_k1_loopQ"), (1, "L_k1_loopV")):
        if vmode:
            a.label("L_k1_setupV")
            a(f"""
            s_sub_u32 s33, s26, 10
            s_lshl_b32 s33, s33, 7
            s_lshr_b32 s38, s40, 2
            s_add_u32 s33, s33, s38
            v_add_u32 v6, s33, v56
            s_mul_i32 s41, s25, 10240
            s_add_u32 s41, s41, {KV_OFF+5120}
            s_lshr_b32 s38, s39, 7
            s_mul_i32 s42, s38, 1280
            s_add_u32 s42, s42, s41
            s_xor_b32 s38, s38, 1
            s_mul_i32 s43, s38, 1280
            s_add_u32 s43, s43, s41
            s_mov_b32 s44, {163840-320}
            v_mul_u32_u24 v7, 320, v57
            v_add_u32 v4, s40, v2
            v_add_u32 v4, {SC+1024}, v4
            v_add_u32 v5, s39, v3
            v_add_u32 v5, {SC}, v5
            """)
            for ft in range(2):
                a(f"v_xor_b32 v8, {32*ft}, v6")
                a(f"v_mul_u32_u24 v9, 3277, v8")
                a(f"v_lshrrev_b32 v9, 16, v9")
                a(f"v_lshl_add_u32 v8, v8, 4, v7")
                a(f"v_mad_u32_u24 v{128+ft}, v9, s44, v8")
        a("""
        s_waitcnt lgkmcnt(0)
        s_mov_b32 s20, s8
        s_mov_b32 s21, s9
        """)
        n0 = st.n
        st()
        a("s_barrier")
        st()
        for t in reads(0, P): a(t)
        a.raw(".p2align 6")
        a.label(L)
        for ks in range(3):
            cur, nxt = (P, Q) if ks % 2 == 0 else (Q, P)
            rd = reads(ks + 1, nxt); m = mfmas(cur, vmode); d = dots(cur)
            a(rd[0]); a(rd[1])
            a("s_waitcnt lgkmcnt(5)"); a(m[0]); a(rd[2]); a(rd[3])
            for t in d[:3]: a(t)
            a("s_waitcnt lgkmcnt(5)"); a(m[1]); a(rd[4]); a(rd[5])
            for t in d[3:]: a(t)
            a("s_waitcnt lgkmcnt(6)"); a(m[2]); a(f"v_xor_b32 v{10+ks}, s31, v{10+ks}"); a(f"v_xor_b32 v{14+ks}, s31, v{14+ks}")
            a(m[3])
        m = mfmas(Q, vmode); d = dots(Q)
        a("s_waitcnt lgkmcnt(3)"); a(m[0])
        a("v_xor_b32 v18, s31, v18"); a("v_xor_b32 v19, s31, v19")
        for t in d[:3]: a(t)
        a("s_waitcnt lgkmcnt(0)"); a(m[1])
        a("s_barrier")
        rd = reads(0, P)
        for t in rd[:3]: a(t)
        for t in d[3:]: a(t)
        a(m[2])
        for t in rd[3:]: a(t)
        a("v_xor_b32 v13, s31, v13"); a("v_xor_b32 v17, s31, v17")
        a(m[3])
        a(f"""
        s_xor_b32 s31, s31, 0x18000
        s_add_u32 s29, s29, 1
        s_cmp_lt_u32 s29, 10
        s_cbranch_scc1 {L}
        """)
        a.check_backedge(L)
        st()
        TA_, CA_ = ("v4", "v5") if not vmode else ("v5", "v4")
        a(f"""
        s_mov_b32 s46, 0x22222222
        s_mov_b32 s47, 0x22222222
        s_mov_b32 s48, 0x44444444
        s_mov_b32 s49, 0x44444444
        s_mov_b32 s50, 0x88888888
        s_mov_b32 s51, 0x88888888
        v_cndmask_b32 v20, v140, v141, s[46:47]
        v_cndmask_b32 v21, v144, v145, s[46:47]
        v_cndmask_b32 v22, v148, v149, s[46:47]
        v_cndmask_b32 v20, v20, v142, s[48:49]
        v_cndmask_b32 v21, v21, v146, s[48:49]
        v_cndmask_b32 v22, v22, v150, s[48:49]
        v_cndmask_b32 v20, v20, v143, s[50:51]
        v_cndmask_b32 v21, v21, v147, s[50:51]
        v_cndmask_b32 v22, v22, v151, s[50:51]
        v_mov_b32 v60, v20
        v_mov_b32 v61, v21
        v_mov_b32 v62, v22
        v_permlane32_swap_b32 v60, v20
        v_permlane32_swap_b32 v61, v21
        v_permlane32_swap_b32 v62, v22
        v_add_f32 v20, v20, v60
        v_add_f32 v21, v21, v61
        v_add_f32 v22, v22, v62
        v_mul_f32 v20, {f2u(-1.0/640):#x}, v20
        v_mul_f32 v21, {f2u(1.0/640):#x}, v21
        v_fma_f32 v21, -v20, v20, v21
        v_max_f32 v21, 0, v21
        v_add_f32 v21, {f2u(1e-5):#x}, v21
        v_rsq_f32 v21, v21
        v_add_u32 v60, s39, v2
        v_add_u32 v61, s40, v2
        v_add_u32 v60, {SC}, v60
        v_add_u32 v61, {SC+1024}, v61
        s_cmp_lt_u32 s26, 5
        s_cselect_b32 s33, {f2u(QS):#x}, 1.0
        v_mul_f32 v21, s33, v21
        ds_write_b32 v60, v21
        ds_write_b32 v60, v20 offset:512
        ds_write_b32 v61, v22
        v_xor_b32 v6, 128, v4
        v_xor_b32 v7, 128, v5
        s_waitcnt lgkmcnt(0)
        s_barrier
        """)
        st()
        if not vmode:
            for tt in range(2):
                a(f"ds_read_b32 v{136+2*tt}, v{4+2*tt}")
                a(f"ds_read_b32 v{137+2*tt}, v{4+2*tt} offset:512")
            for ft in range(2):
                for g in range(4):
                    r = 24 + 16 * ft + 4 * g
                    a(f"ds_read_b128 v[{r}:{r+3}], v{5+2*ft} offset:{32*g}")
            for ft in range(2):
                a(f"s_waitcnt lgkmcnt({4*(1-ft)})")
                for tt in range(2):
                    am = 136 + 2 * tt
                    acc = 64 + 16 * (2 * tt + ft)
                    for g in range(4):
                        for p in range(2):
                            r = acc + 4 * g + 2 * p; c = 24 + 16 * ft + 4 * g + 2 * p
                            a(f"v_pk_fma_f32 v[{r}:{r+1}], v[{c}:{c+1}], v[{am}:{am+1}], v[{r}:{r+1}] op_sel:[0,1,0] op_sel_hi:[1,1,1]")
                        for p in range(2):
                            r = acc + 4 * g + 2 * p
                            a(f"v_pk_mul_f32 v[{r}:{r+1}], v[{r}:{r+1}], v[{am}:{am+1}] op_sel:[0,0] op_sel_hi:[1,0]")
                        r = acc + 4 * g
                        a(f"v_cvt_pk_bf16_f32 v{r}, v{r}, v{r+1}")
                        a(f"v_cvt_pk_bf16_f32 v{r+1}, v{r+2}, v{r+3}")
                        a(f"buffer_store_dwordx2 v[{r}:{r+1}], v{128+4*ft+g}, s[20:23], s{42+tt} offen")
            st(); a("s_waitcnt vmcnt(0)") if os.environ.get("STAMP") else None; st(); st.flush(2, 24)
            a("s_endpgm")
            st.n = n0
        else:
            a(f"ds_read_b32 v130, v4")
            a(f"ds_read_b32 v132, v6")
            for tt in range(2):
                B = (24, 136)[tt]
                for g in range(4):
                    a(f"ds_read_b128 v[{B+4*g}:{B+4*g+3}], v{5+2*tt} offset:{32*g}")
                    a(f"ds_read_b128 v[{B+16+4*g}:{B+19+4*g}], v{5+2*tt} offset:{512+32*g}")
            for tt in range(2):
                B = (24, 136)[tt]
                a(f"s_waitcnt lgkmcnt({8*(1-tt)})")
                for ft in range(2):
                    acc = 64 + 16 * (2 * tt + ft)
                    cs = 130 + 2 * ft
                    for j in range(2):
                        for p in range(4):
                            r = acc + 8 * j + 2 * p; m_ = B + 16 + 8 * j + 2 * p
                            a(f"v_pk_fma_f32 v[{r}:{r+1}], v[{m_}:{m_+1}], v[{cs}:{cs+1}], v[{r}:{r+1}] op_sel:[0,0,0] op_sel_hi:[1,0,1]")
                        for p in range(4):
                            r = acc + 8 * j + 2 * p; m_ = B + 8 * j + 2 * p
                            a(f"v_pk_mul_f32 v[{r}:{r+1}], v[{r}:{r+1}], v[{m_}:{m_+1}]")
                        r = acc + 8 * j
                        for p in range(4):
                            a(f"v_cvt_pk_bf16_f32 v{r+p}, v{r+2*p}, v{r+2*p+1}")
                        a(f"buffer_store_dwordx4 v[{r}:{r+3}], v{128+ft}, s[20:23], s{42+tt} offen offset:{640*j}")
            st(); a("s_waitcnt vmcnt(0)") if os.environ.get("STAMP") else None; st(); st.flush(2, 24)
    a.label("L_k1_end")
    a("s_endpgm")
    a.label("k1_kernel_hotend")
    a.label("L_k1_side")
    a(f"""
    s_cmp_ge_u32 s2, 256
    s_cbranch_scc1 L_k1_end
    s_load_dwordx4 s[40:43], s[0:1], 32
    v_lshrrev_b32 v2, 6, v0
    v_and_b32 v1, 63, v0
    s_sub_u32 s25, s2, 240
    v_readfirstlane_b32 s24, v2
    v_lshlrev_b32 v2, 4, v1
    s_mov_b32 s14, {640*3456}
    s_mov_b32 s15, 0x20000
    s_mov_b32 s22, {WS_USED}
    s_mov_b32 s23, 0x20000
    s_mul_i32 s27, s25, 40
    s_and_b32 s28, s24, 3
    s_mul_i32 s29, s28, 10
    s_add_u32 s27, s27, s29
    s_mul_i32 s27, s27, 3456
    s_cmp_lt_u32 s24, 4
    s_mov_b32 exec_hi, 0x003fffff
    s_waitcnt lgkmcnt(0)
    s_cselect_b32 s12, s40, s42
    s_cselect_b32 s13, s41, s43
    s_mov_b32 s20, s8
    s_mov_b32 s21, s9
    """)
    def rowloads(B):
        for i in range(4): a(f"buffer_load_dwordx4 v[{B+4*i}:{B+4*i+3}], v2, s[12:15], s27 offen offset:{864*i}")
        a("s_add_u32 s27, s27, 3456")
    for r in range(7): rowloads(48 + 16 * r)
    for i in range(32): a(f"v_mov_b32 v{8+i}, 0")
    for r in range(10):
        B = 48 + 16 * (r % 7)
        left = min(9, r + 6) - r
        a(f"s_waitcnt vmcnt({4*left})")
        for d in range(16):
            a(f"v_lshlrev_b32 v4, 16, v{B+d}\nv_and_b32 v5, 0xffff0000, v{B+d}\nv_pk_add_f32 v[{8+2*d}:{9+2*d}], v[{8+2*d}:{9+2*d}], v[4:5]")
        if r + 7 < 10: rowloads(B)
    a(f"""
    s_mul_i32 s29, s24, 6912
    v_lshl_add_u32 v3, v1, 5, s29
    """)
    for i in range(4):
        a(f"ds_write_b128 v3, v[{8+8*i}:{11+8*i}] offset:{1728*i}")
        a(f"ds_write_b128 v3, v[{12+8*i}:{15+8*i}] offset:{1728*i+16}")
    a(f"""
    s_lshr_b32 s29, s24, 2
    s_mul_i32 s30, s29, {4*6912}
    s_mul_i32 s31, s28, 1728
    s_add_u32 s30, s30, s31
    v_lshl_add_u32 v3, v1, 5, s30
    s_mul_i32 s29, s29, 6912
    s_add_u32 s29, s29, s31
    s_mul_i32 s30, s25, 13824
    s_add_u32 s29, s29, s30
    s_add_u32 s29, s29, {CSP_OFF}
    v_lshlrev_b32 v2, 5, v1
    s_waitcnt lgkmcnt(0)
    s_barrier
    """)
    for p in range(4):
        a(f"ds_read_b128 v[{8+8*p}:{11+8*p}], v3 offset:{6912*p}")
        a(f"ds_read_b128 v[{12+8*p}:{15+8*p}], v3 offset:{6912*p+16}")
    a("s_waitcnt lgkmcnt(0)")
    for e in range(4):
        a(f"v_pk_add_f32 v[{8+2*e}:{9+2*e}], v[{8+2*e}:{9+2*e}], v[{16+2*e}:{17+2*e}]")
        a(f"v_pk_add_f32 v[{24+2*e}:{25+2*e}], v[{24+2*e}:{25+2*e}], v[{32+2*e}:{33+2*e}]")
        a(f"v_pk_add_f32 v[{8+2*e}:{9+2*e}], v[{8+2*e}:{9+2*e}], v[{24+2*e}:{25+2*e}]")
    a("""
    buffer_store_dwordx4 v[8:11], v2, s[20:23], s29 offen
    buffer_store_dwordx4 v[12:15], v2, s[20:23], s29 offen offset:16
    s_endpgm
    """)
    return dict(name=name, vgpr=168, sgpr=100, grid=256, block=512, lds=K1_LDS)
```
